```python
import torch

def _softmax(x, axis=-1):
    return torch.softmax(x, dim=axis)
def _gelu(x):
    return torch.nn.functional.gelu(x, approximate="tanh")
def _silu(x):
    return torch.nn.functional.silu(x)
def _sigmoid(x):
    return torch.sigmoid(x)
def _layernorm(x, axis=-1, eps=1e-5):
    m = x.mean(dim=axis, keepdim=True)
    v = x.var(dim=axis, keepdim=True, unbiased=False)
    return (x - m) / torch.sqrt(v + eps)
def _scatter_add(tgt, idx, src, axis=0):
    return tgt.clone().index_add_(axis, idx, src)
def _segment_sum(src, seg, n):
    out = torch.zeros((n,) + src.shape[1:], dtype=src.dtype)
    return out.index_add_(0, seg, src)
def _pad(x, pw):
    flat = tuple(v for pair in reversed(pw) for v in pair)
    return torch.nn.functional.pad(x, flat)

kernel_name = 'standalone__batchnorm__sampling'

def setup_inputs():

    _w = (lambda a: (lambda t: t.to(torch.bfloat16) if t.is_floating_point() else t)(torch.as_tensor(a)))
    B, S, C = 1024, 32, 576
    K = 3
    return {
        "x": _w((lambda *s: torch.randn(*s, dtype=torch.bfloat16) * 0.05)(B, S, C)),
        "w": _w((lambda *s: torch.randn(*s, dtype=torch.bfloat16) * 0.05)(K, C, C) * (1.0 / (K * C) ** 0.5)),
        "mean": _w((lambda *s: torch.randn(*s, dtype=torch.bfloat16) * 0.05)(C) * 0.1),
        "var": _w(torch.abs((lambda *s: torch.randn(*s, dtype=torch.bfloat16) * 0.05)(C)) + 0.5),
        "g": _w((lambda *s: torch.randn(*s, dtype=torch.bfloat16) * 0.05)(C) + 1.0),
        "b": _w((lambda *s: torch.randn(*s, dtype=torch.bfloat16) * 0.05)(C) * 0.1),
    }

def reference(x, w, mean, var, g, b):
    K = 3
    P = K // 2
    S = x.shape[1]
    xp = _pad(x, ((0, 0), (P, P), (0, 0)))
    y = sum(torch.einsum('bsc,cd->bsd', xp[:, k:k + S, :], w[k]) for k in range(K))
    inv_std = 1.0 / torch.sqrt(var + 1e-5)
    y = (y - mean) * (g * inv_std) + b
    return _silu(y)
```

```python
import re

def regs(spec):
    spec = spec.strip().lstrip('-')
    m = re.fullmatch(r'([vas])\[(\d+):(\d+)\]', spec)
    if m:
        return [f"{m.group(1)}{i}" for i in range(int(m.group(2)), int(m.group(3)) + 1)]
    if re.fullmatch(r'[vas]\d+', spec) or spec in ('m0', 'vcc', 'exec'):
        return [spec]
    return []

def R(c, i, n=1):
    return f"{c}{i}" if n == 1 else f"{c}[{i}:{i+n-1}]"

class I:
    __slots__ = ("txt", "kind", "rd", "wr", "tag", "srcc", "cost")
    def __init__(self, txt, kind, rd=(), wr=(), tag=None, srcc=(), cost=4):
        self.txt, self.kind, self.tag, self.cost = txt, kind, tag, cost
        self.rd, self.wr, self.srcc = set(rd), set(wr), set(srcc)

def _ops(dst, srcs):
    rd = []
    for s in srcs:
        rd += regs(str(s))
    return rd, regs(dst)

def V(op, dst, *srcs, mod="", rmw=False):
    rd, wr = _ops(dst, srcs)
    if rmw:
        rd += wr
    kind = "valu"
    cost = 4
    if re.match(r'v_(exp|log|rcp|rsq|sqrt)_f32', op):
        kind, cost = "trans", 8
    if op.endswith("_dpp"):
        kind = "dpp"
    return I(f"{op} {dst}, " + ", ".join(str(s) for s in srcs) + (" " + mod if mod else ""), kind, rd, wr, cost=cost)

def S(op, dst, *srcs):
    rd, wr = _ops(dst, srcs)
    if op.startswith("s_cmp"):
        rd += wr
        wr = []
    return I(f"{op} {dst}" + "".join(f", {s}" for s in srcs), "salu", rd, wr)

def RAW(txt, kind="misc", rd=(), wr=()):
    return I(txt, kind, rd, wr)

def MFMA(d, a, b, c):
    rd = regs(a) + regs(b) + regs(str(c))
    return I(f"v_mfma_f32_16x16x32_bf16 {d}, {a}, {b}, {c}", "mfma", rd, regs(d), srcc=regs(str(c)))

def DSR(op, dst, addr, off=0, tag=None):
    assert 0 <= off < 65536, off
    return I(f"{op} {dst}, {addr}" + (f" offset:{off}" if off else ""), "dsr", regs(addr), regs(dst), tag=tag)

def DSW(op, addr, src, off=0, tag=None, cost=12):
    assert 0 <= off < 65536
    return I(f"{op} {addr}, {src}" + (f" offset:{off}" if off else ""), "dsw", regs(addr) + regs(src), [], tag=tag, cost=cost)

def DMA(voff, srd, soff, off=0, tag=None, flags=""):
    assert 0 <= off < 4096
    return I(f"buffer_load_dwordx4 {voff}, {srd}, {soff} offen" + (f" offset:{off}" if off else "") + (" " + flags if flags else "") + " lds",
             "dma", regs(voff) + regs(srd) + regs(str(soff)) + ["m0"], [], tag=tag, cost=8)

def BLD(op, dst, voff, srd, soff, off=0, tag=None, flags="", rmw=False):
    assert 0 <= off < 4096
    return I(f"{op} {dst}, {voff}, {srd}, {soff} offen" + (f" offset:{off}" if off else "") + (" " + flags if flags else ""),
             "vld", regs(voff) + regs(srd) + regs(str(soff)), regs(dst), tag=tag, cost=8)

def GLD(op, dst, voff, sbase, tag=None, flags=""):
    return I(f"{op} {dst}, {voff}, {sbase}" + (" " + flags if flags else ""), "vld", regs(voff) + regs(sbase), regs(dst), tag=tag, cost=8)

def BST(op, src, voff, srd, soff, off=0, tag=None, flags="", cost=20):
    assert 0 <= off < 4096
    return I(f"{op} {src}, {voff}, {srd}, {soff} offen" + (f" offset:{off}" if off else "") + (" " + flags if flags else ""),
             "vst", regs(src) + regs(voff) + regs(srd) + regs(str(soff)), [], tag=tag, srcc=regs(src), cost=cost)

def WAITPT(vm=(), ds=()):
    return I("", "waitpt", tag=(tuple(vm), tuple(ds)))

def WAITTAG(vm=(), ds=()):
    return I("", "waittag", tag=(tuple(vm), tuple(ds)))

BAR = lambda: I("s_barrier", "bar")

def insert_waits(prog, stats=None):
    out = []
    dsq, vmq = [], []
    ds_done = vm_done = 0
    dreg, vreg = {}, {}
    dtag, vtag = {}, {}
    n = len(prog)
    def need(ins):
        a = b = -1
        for r in ins.rd | ins.wr:
            a = max(a, dreg.get(r, -1)); b = max(b, vreg.get(r, -1))
        return a, b
    def emit(a, b, adhoc):
        nonlocal ds_done, vm_done
        parts = []
        if b >= vm_done:
            c = len(vmq) - 1 - b
            assert c < 63, c
            parts.append(f"vmcnt({c})"); vm_done = b + 1
        if a >= ds_done:
            c = min(len(dsq) - 1 - a, 15)
            assert c < 15, ("lgkm overflow", c)
            parts.append(f"lgkmcnt({c})"); ds_done = a + 1
        if parts:
            out.append(I("s_waitcnt " + " ".join(parts), "wait"))
            if stats is not None:
                stats["adhoc" if adhoc else "waits"] = stats.get("adhoc" if adhoc else "waits", 0) + 1
    for k, ins in enumerate(prog):
        if ins.kind in ("waitpt", "waittag"):
            a = b = -1
            for t in ins.tag[0]:
                b = max(b, vtag.get(t, -1))
            for t in ins.tag[1]:
                a = max(a, dtag[t])
            if ins.kind == "waitpt":
                j = k + 1
                while j < n and prog[j].kind not in ("waitpt", "fence"):
                    x, y = need(prog[j]); a = max(a, x); b = max(b, y); j += 1
            emit(a, b, False)
            continue
        if ins.kind == "fence":
            continue
        if ins.kind == "drain":
            out.append(I("s_waitcnt vmcnt(0) lgkmcnt(0)", "wait"))
            ds_done, vm_done = len(dsq), len(vmq)
            continue
        a, b = need(ins)
        if ins.kind == "dsr":
            a = max([dreg.get(r, -1) for r in ins.rd] + [-1])
        if ins.kind == "vld":
            b = max([vreg.get(r, -1) for r in ins.rd] + [-1])
        if ins.kind in ("dsr", "dsw") and len(dsq) - ds_done >= 15:
            a = max(a, len(dsq) - 13)
        if ins.kind in ("dma", "vld", "vst") and len(vmq) - vm_done >= 62:
            b = max(b, len(vmq) - 60)
        emit(a, b, True)
        out.append(ins)
        if ins.kind in ("dsr", "dsw"):
            dsq.append(ins)
            for r in ins.wr: dreg[r] = len(dsq) - 1
            if ins.tag: dtag[ins.tag] = len(dsq) - 1
        if ins.kind in ("dma", "vld", "vst"):
            vmq.append(ins)
            for r in ins.wr: vreg[r] = len(vmq) - 1
            if ins.tag: vtag[ins.tag] = len(vmq) - 1
    return out

VALUK = ("valu", "trans", "dpp")

def pad_hazards(prog, stats=None):
    out = []
    def states(ins):
        m = re.match(r's_nop (\d+)', ins.txt)
        if m: return int(m.group(1)) + 1
        return 0 if ins.kind == "label" else 1
    for ins in prog:
        need = 0
        dist = 0
        for p in reversed(out[-24:]):
            req = 0
            if p.kind in VALUK:
                if ins.kind == "mfma" and p.wr & ins.rd: req = 2
                if ins.kind == "dpp" and p.wr & ins.rd: req = 2
                if p.kind == "trans" and ins.kind in VALUK + ("dsw", "vst") and p.wr & ins.rd: req = max(req, 1)
                if ins.txt.startswith(("v_readfirstlane", "v_readlane")) and p.wr & ins.rd: req = max(req, 1)
                sw = {r for r in p.wr if r[0] == 's' or r == 'vcc'}
                if sw & ins.rd:
                    if ins.kind in ("dma", "vld", "vst"): req = max(req, 5)
                    elif ins.kind in VALUK: req = max(req, 2)
            if p.kind == "mfma":
                if ins.kind in VALUK and p.wr & (ins.rd | ins.wr): req = 8
                if ins.kind in ("dsr", "dsw", "vst", "vld", "dma") and p.wr & (ins.rd | ins.wr): req = 8
                if ins.kind == "mfma":
                    if p.wr & (ins.rd - ins.srcc): req = 8
                    elif p.wr & ins.srcc and p.wr != ins.srcc: req = 6
                if ins.kind in VALUK and p.srcc & ins.wr: req = max(req, 3)
            if p.kind == "salu" and "m0" in p.wr and ins.kind == "dma": req = 1
            if p.kind == "vst" and len(p.srcc) >= 3 and p.srcc & ins.wr: req = max(req, 2)
            need = max(need, req - dist)
            dist += states(p)
        if need > 0:
            out.append(I(f"s_nop {need-1}", "nop"))
            if stats is not None:
                stats["nops"] = stats.get("nops", 0) + 1
                stats.setdefault("noplist", []).append((len(out), need, ins.txt))
        out.append(ins)
    return out
```

```python
import sys, struct
from asmlib import *

def f2u(x):
    return "0x%08x" % struct.unpack("<I", struct.pack("<f", x))[0]

NAME = "standalone__batchnorm__sampling_kernel"
LOG2E = 1.4426950408889634
ROW = 1152
BATCH = 36864
TAP = 663552
SLOT = 36864
GHALF = 27 * SLOT
XLDS = 3 * SLOT
STG = XLDS + 4 * 12288
NSTEP = 36

SX, SW, SG, SGS, SO, SD = "s[8:11]", "s[12:15]", "s[16:19]", "s[20:23]", "s[24:27]", "s[28:31]"
sWAVE, sH, sRB, sLW, sXB0, sXB1, sWB, sGB, sXL = "s40", "s41", "s42", "s43", "s44", "s45", "s46", "s47", "s48"
sOB = ["s49", "s50"]
sSP1, sGA, sGBb, sGC = "s51", "s52", "s53", "s54"
sMASK = "s55"
sC2, sC = "s[56:57]", "s56"
sPN, sPK, sPSRC, sPDST, sPDST2 = "s58", "s59", "s60", "s61", "s62"
sT = ["s3", "s4", "s5", "s6", "s7"]
sSTAMP = 84
vWLO, vWHI, vXRD, vXDMA, vS0, vS1, vSR, vTAB = "v32", "v33", "v34", "v35", "v36", "v37", "v38", "v39"
TMP = 40
vPOLL = "v46"
QB, PB = 48, 192
vW1, vTR, vTF, vAOFF, vONE = "v192", 193, "v197", "v198", "v199"

def Qt(j): return R("v", QB + 4 * j, 4)
def Pt(j): return R("v", PB + 4 * j, 4) if j < 16 else R("a", 144 + 4 * (j - 16), 4)
def Rt(j): return R("a", 4 * j, 4)
def Wf(F): return 224 + 4 * (F % 8)
def phase(s): return 1 if s < 9 else (2 if s < 27 else 3)

DEF = dict(LA=6, stamps=False, nosignal=False, spin=4000, wpos=(1, 3, 6, 8, 11, 13, 16, 18, 21), xpos=(24, 27, 30, 33),
           gflags="sc1", stflags="", pf_w=True, pf_code=True, pollwin=5, sigwin=2, xflags="")

class Gap:
    def __init__(self):
        self.pre, self.mem, self.valu, self.post = [], [], [], []
    def used(self):
        return sum(i.cost for i in self.mem + self.valu)

def scale_calc(var, g, t):
    def rnd(r): return [V("v_cvt_pk_bf16_f32", r, r, r), V("v_and_b32", r, sMASK, r)]
    L = [V("v_add_f32", var, f2u(1e-5), var)] + rnd(var)
    L += [V("v_sqrt_f32", var, var)] + rnd(var)
    L += [V("v_rcp_f32", var, var)] + rnd(var)
    L += [V("v_mul_f32", var, g, var)] + rnd(var)
    return L

def prod_pair(a, b, c, sh, o1, o2, o3, t):
    L = []
    for e in range(2):
        L.append(V("v_add_f32", a[e], a[e], c[e]))
    for e in range(2):
        L.append(V("v_mul_f32", a[e], a[e], sh))
    for e in range(2):
        L.append(V("v_mul_f32", c[e], c[e], sh))
    for e in range(2):
        L.append(V("v_fma_f32", t[e], b[e], sh, a[e]))
    for e in range(2):
        L.append(V("v_fma_f32", a[e], "-" + b[e], sh, a[e]))
    for e in range(2):
        L.append(V("v_add_f32", c[e], c[e], c[e]))
    L.append(V("v_cvt_pk_bf16_f32", o1, t[0], t[1]))
    L.append(V("v_cvt_pk_bf16_f32", o2, a[0], a[1]))
    L.append(V("v_cvt_pk_bf16_f32", o3, c[0], c[1]))
    return L

def prod_addr():
    L = [S("s_mul_i32", sPSRC, sPK, 32 * ROW), S("s_lshl_b32", sT[0], sPN, 5), S("s_add_u32", sPSRC, sPSRC, sT[0]),
         S("s_mul_i32", sT[1], sH, 576), S("s_add_u32", sPSRC, sPSRC, sT[1]), S("s_add_u32", sT[2], sT[0], sT[1]),
         S("s_mul_i32", sT[1], sH, GHALF), S("s_lshl_b32", sT[0], sPN, 10), S("s_add_u32", sT[1], sT[1], sT[0]),
         S("s_mul_i32", sPDST, sPK, SLOT), S("s_add_u32", sPDST, sPDST, sT[1]),
         S("s_mul_i32", sPDST2, sPK, SLOT // 2), S("s_add_u32", sPDST2, sPDST2, sT[1]), S("s_add_u32", sPDST2, sPDST2, 18 * SLOT)]
    return L

def prod_store(srd, o, tag=None):
    return [BST("buffer_store_dwordx4", R("v", o, 4), vWLO, srd, sPDST, flags="sc1"),
            S("s_add_u32", sPDST, sPDST, SLOT // 2),
            BST("buffer_store_dwordx4", R("v", o + 4, 4), vWLO, srd, sPDST, flags="sc1"),
            BST("buffer_store_dwordx4", R("v", o + 8, 4), vWLO, srd, sPDST2, flags="sc1", tag=tag)]

def gen(**kw):
    c = dict(DEF); c.update(kw)
    LA = c["LA"]
    nstamp = [0]
    def stamp():
        if not c["stamps"]: return []
        k = nstamp[0]; nstamp[0] += 1
        assert k < 8
        return [RAW(f"s_memtime s[{sSTAMP+2*k}:{sSTAMP+2*k+1}]", "salu")]

    def w_dmas(s):
        slot = (s % 3) * SLOT
        out = []
        if phase(s) == 1:
            for m in range(9):
                pre = [S("s_add_u32", "m0", sLW, slot + 960 * m)]
                early = [S("s_add_u32", sSP1, sWB, 64 * s * ROW)] if m == 0 else []
                out.append((early, pre, DMA(vW1, SW, sSP1, 64 * m, tag=f"W{s}")))
        else:
            sr = [sGA, sGBb, sGC]
            for i in range(9):
                pre, early = [], []
                if i % 4 == 0:
                    pre = [S("s_add_u32", "m0", sLW, slot + 1024 * i)]
                    early = [S("s_add_u32", sr[i // 4], sGB, (s - 9) * SLOT + 1024 * i)]
                out.append((early, pre, DMA(vWLO, SG, sr[i // 4], 1024 * (i % 4), tag=f"W{s}", flags=c["gflags"])))
        return link(out)
    def x_dmas(s):
        out = []
        for i in range(4):
            b, sec = i >> 1, i & 1
            if phase(s) == 1: imm = ROW + 128 * s + 64 * sec
            elif phase(s) == 2: imm = ROW * sec + 64 * (s - 9)
            else: imm = 128 * (s - 27) + 64 * sec
            lds = (s % 3) * 4096 + 1024 * i - imm
            op = S("s_add_u32", "m0", sXL, lds) if lds >= 0 else S("s_sub_u32", "m0", sXL, -lds)
            out.append(([], [op], DMA(vXDMA, SX, [sXB0, sXB1][b], imm, tag=f"X{s}", flags=c["xflags"])))
        return link(out)
    expect = {}
    def link(dl):
        cur = {}
        for e, p, d in dl:
            for it in e + p:
                for r in it.wr: cur[r] = it
            expect[id(d)] = {r: it for r, it in cur.items() if r in d.rd}
        return dl
    def flat(dl):
        L = []
        for e, p, d in dl: L += e + p + [d]
        return L

    quads = {}
    st = {0: [0, 4, 8, 12], 1: [16, 20, 24, 28]}
    for s in range(NSTEP):
        q = st[s % 2]
        if s >= 2: q = [q[0], q[2], q[1], q[3]]
        st[s % 2] = q
        quads[s] = q
    def x_reads(s):
        F0, F1, S0, S1 = quads[s]
        return [DSR("ds_read_b128", R("v", r, 4), vXRD, (s % 3) * 4096 + 1024 * i) for i, r in enumerate((F0, S0, F1, S1))]
    def w_reads(F):
        s, f = divmod(F, 36)
        slot = (s % 3) * SLOT
        if phase(s) == 1:
            kk, n = divmod(f, 18)
            m, u = n >> 1, n & 1
            hi = 1 if s % 3 == 2 else 0
            off = (0 if hi else slot) + kk * 18432 + m * 1024
            return [DSR("ds_read_b64_tr_b16", R("a", Wf(F) + 2 * hf, 2), f"v{vTR + 2 * hi + u}", off + 256 * hf) for hf in range(2)]
        off = slot + 1024 * f
        return [DSR("ds_read_b128", R("a", Wf(F), 4), vWLO if off < 65536 else vWHI, off & 65535)]

    P = []
    A = P.append
    P += stamp()
    if c["stamps"]: A(RAW("s_memrealtime s[100:101]", "salu"))
    A(RAW("s_load_dwordx16 s[64:79], s[0:1], 0", "salu"))
    A(RAW("s_load_dwordx2 s[80:81], s[0:1], 64", "salu"))
    A(V("v_lshrrev_b32", "v1", 6, "v0"))
    A(V("v_and_b32", "v2", 63, "v0"))
    A(V("v_readfirstlane_b32", sWAVE, "v1"))
    A(S("s_mov_b32", sMASK, "0xffff0000"))
    A(S("s_mov_b32", "s56", f2u(-LOG2E))); A(S("s_mov_b32", "s57", f2u(-LOG2E)))
    A(S("s_lshr_b32", sH, "s2", 3)); A(S("s_and_b32", sH, sH, 1))
    A(S("s_lshr_b32", sRB, "s2", 4)); A(S("s_lshl_b32", sRB, sRB, 3)); A(S("s_and_b32", sT[0], "s2", 7)); A(S("s_or_b32", sRB, sRB, sT[0]))
    A(V("v_lshlrev_b32", vWLO, 4, "v2"))
    A(V("v_lshrrev_b32", "v3", 2, "v2"))
    A(V("v_and_b32", "v4", 3, "v2"))
    A(V("v_lshrrev_b32", "v5", 4, "v2"))
    A(V("v_and_b32", "v6", 15, "v2"))
    A(S("s_lshl_b32", sT[3], sRB, 2)); A(S("s_add_u32", sT[3], sT[3], sWAVE))
    A(S("s_min_u32", sT[4], sT[3], 323))
    A(S("s_mul_i32", sPK, sT[4], 3641)); A(S("s_lshr_b32", sPK, sPK, 16))
    A(S("s_mul_i32", sPN, sPK, 18)); A(S("s_sub_u32", sPN, sT[4], sPN))
    P += prod_addr()
    A(V("v_lshlrev_b32", "v8", 1, "v6")); A(V("v_add_u32", "v8", sT[2], "v8"))
    A(V("v_lshrrev_b32", "v9", 1, "v2")); A(V("v_mul_u32_u24", "v9", ROW, "v9"))
    A(V("v_and_b32", "v10", 1, "v2")); A(V("v_lshl_add_u32", "v9", "v10", 4, "v9"))
    A(S("s_mul_i32", sLW, sWAVE, 9216))
    A(S("s_mul_i32", sT[0], sH, 576))
    A(V("v_lshlrev_b32", "v11", 2, "v0")); A(V("v_add_u32", "v11", sT[0], "v11")); A(V("v_min_u32", "v11", 1148, "v11"))
    A(S("s_mul_i32", sWB, sWAVE, 16 * ROW)); A(S("s_add_u32", sWB, sWB, sT[0]))
    A(S("s_lshl_b32", sXB0, sRB, 2)); A(S("s_add_u32", sXB0, sXB0, sWAVE)); A(S("s_mul_i32", sXB0, sXB0, 2 * BATCH))
    A(S("s_add_u32", sXB1, sXB0, BATCH))
    A(S("s_add_u32", sOB[0], sXB0, sT[0])); A(S("s_add_u32", sOB[1], sXB1, sT[0]))
    A(S("s_mul_i32", sGB, sH, GHALF)); A(S("s_add_u32", sGB, sGB, sLW))
    A(S("s_mul_i32", sXL, sWAVE, 12288)); A(S("s_add_u32", sXL, sXL, XLDS))
    A(V("v_lshrrev_b32", "v7", 5, "v2")); A(V("v_lshlrev_b32", "v7", 1, "v7")); A(V("v_xor_b32", "v7", "v4", "v7"))
    A(V("v_mul_u32_u24", vW1, ROW, "v3")); A(V("v_lshl_add_u32", vW1, "v7", 4, vW1))
    A(V("v_sub_u32", "v7", 0, "v5")); A(V("v_and_b32", "v7", 3, "v7")); A(V("v_xor_b32", "v7", "v4", "v7"))
    A(V("v_mul_u32_u24", vXDMA, 2 * ROW, "v3")); A(V("v_lshl_add_u32", vXDMA, "v7", 4, vXDMA))
    A(RAW("s_waitcnt lgkmcnt(0)", "wait"))
    def srd(base, lo, nrec):
        return [S("s_mov_b32", f"s{base}", f"s{lo}"), S("s_mov_b32", f"s{base+1}", f"s{lo+1}"),
                S("s_mov_b32", f"s{base+2}", nrec), S("s_mov_b32", f"s{base+3}", "0x20000")]
    P += srd(12, 66, 3 * TAP)
    A(GLD("global_load_ushort", "v12", "v8", "s[70:71]")); A(GLD("global_load_ushort", "v13", "v8", "s[72:73]"))
    for tap in range(3):
        A(S("s_add_u32", "m0", sLW, 2 * SLOT + 1024 * tap))
        if tap: A(S("s_add_u32", sPSRC, sPSRC, TAP))
        A(DMA("v9", SW, sPSRC, tag="PR"))
    for i in range(4):
        A(GLD("global_load_dword", f"v{16+i}", "v11", f"s[{68+2*i}:{69+2*i}]"))
    P += srd(8, 64, 1024 * BATCH)
    P += flat(w_dmas(0)) + flat(x_dmas(0))
    if c["pf_code"]:
        A(RAW("s_getpc_b64 s[82:83]", "salu", wr=["s82", "s83"]))
        A(RAW("L_pc:", "label"))
        A(S("s_lshr_b32", sT[0], "s2", 3)); A(S("s_and_b32", sT[0], sT[0], 3)); A(S("s_lshl_b32", sT[0], sT[0], 15))
        A(V("v_lshlrev_b32", "v14", 7, "v0")); A(V("v_add_u32", "v14", sT[0], "v14"))
        A(S("s_mov_b32", sT[1], "L_codeend-L_pc-4"))
        A(V("v_min_u32", "v14", sT[1], "v14"))
        A(GLD("global_load_dword", "v254", "v14", "s[82:83]"))
    if c["pf_w"]:
        A(S("s_lshr_b32", sT[0], "s2", 3)); A(S("s_mul_i32", sT[0], sT[0], 20736))
        A(V("v_lshlrev_b32", "v15", 7, "v0")); A(V("v_min_u32", "v15", 20736 - 128, "v15"))
        A(BLD("buffer_load_dword", "v255", "v15", SW, sT[0]))
    P += flat(x_dmas(1)) + flat(w_dmas(1)) + flat(x_dmas(2))
    P += srd(16, 80, 2 * GHALF) + srd(20, 80, 2 * GHALF) + srd(24, 76, 1024 * BATCH) + srd(28, 78, 256)
    A(S("s_cmp_lt_u32", sT[3], 324)); A(S("s_cselect_b32", "s22", "s22", 0))
    A(V("v_add_u32", vWHI, 65536, vWLO))
    A(V("v_lshrrev_b32", "v7", 2, "v6")); A(V("v_sub_u32", "v7", 0, "v7")); A(V("v_and_b32", "v7", 3, "v7"))
    A(V("v_xor_b32", "v10", "v5", "v7")); A(V("v_lshlrev_b32", "v10", 4, "v10"))
    A(V("v_lshl_add_u32", vXRD, "v6", 6, "v10")); A(V("v_add_u32", vXRD, sXL, vXRD))
    A(S("s_lshl_b32", sT[0], sWAVE, 10)); A(S("s_add_u32", sT[0], sT[0], STG))
    A(V("v_lshrrev_b32", "v20", 1, "v5")); A(V("v_and_b32", "v21", 1, "v5"))
    A(V("v_xor_b32", "v10", "v20", "v7")); A(V("v_lshlrev_b32", "v10", 4, "v10")); A(V("v_lshl_add_u32", "v10", "v21", 3, "v10"))
    A(V("v_lshl_add_u32", vS0, "v6", 6, "v10")); A(V("v_add_u32", vS0, sT[0], vS0)); A(V("v_xor_b32", vS1, 32, vS0))
    A(V("v_add_u32", vSR, sT[0], vWLO))
    A(V("v_lshlrev_b32", vTAB, 4, "v5")); A(V("v_add_u32", vTAB, STG, vTAB))
    A(V("v_and_b32", "v22", 3, "v3"))
    A(V("v_lshl_add_u32", "v23", "v21", 3, "v22")); A(V("v_lshlrev_b32", "v23", 6, "v23"))
    A(V("v_mul_u32_u24", "v24", 9216, "v20")); A(V("v_add_u32", "v23", "v23", "v24"))
    A(V("v_lshrrev_b32", "v24", 1, "v4")); A(V("v_lshl_add_u32", "v24", "v21", 1, "v24")); A(V("v_lshl_add_u32", "v23", "v24", 4, "v23"))
    A(V("v_and_b32", "v24", 1, "v4")); A(V("v_lshl_add_u32", f"v{vTR}", "v24", 3, "v23"))
    A(V("v_xor_b32", f"v{vTR+1}", 32, f"v{vTR}"))
    A(V("v_add_u32", f"v{vTR+2}", 2 * SLOT, f"v{vTR}")); A(V("v_add_u32", f"v{vTR+3}", 2 * SLOT, f"v{vTR+1}"))
    A(V("v_subrev_u32", "v24", 16, "v6")); A(V("v_cvt_f32_i32", vTF, "v24")); A(V("v_add_f32", vTF, vTF, vTF))
    A(S("s_lshl_b32", sT[0], sH, 7)); A(S("s_cmp_lt_u32", sRB, 81)); A(S("s_cselect_b32", sT[0], sT[0], 4096))
    A(V("v_lshlrev_b32", vAOFF, 8, "v0")); A(V("v_add_u32", vAOFF, sT[0], vAOFF)); A(V("v_mov_b32", vONE, 1))
    A(V("v_lshl_add_u32", "v24", "v5", 3, "v22")); A(V("v_lshlrev_b32", "v24", 5, "v24")); A(V("v_lshl_add_u32", "v24", "v4", 3, "v24"))
    A(S("s_add_u32", sT[0], sLW, 2 * SLOT)); A(V("v_add_u32", "v24", sT[0], "v24"))
    A(V("v_lshlrev_b32", "v12", 16, "v12")); A(V("v_lshlrev_b32", "v13", 16, "v13"))
    P += scale_calc("v12", "v13", None)
    A(V("v_mul_f32", "v12", f2u(-LOG2E / 2), "v12"))
    A(WAITTAG(vm=["PR"]))
    for tap in range(3):
        for hf in range(2):
            A(DSR("ds_read_b64_tr_b16", R("v", 200 + 4 * tap + 2 * hf, 2), "v24", 1024 * tap + 128 * hf, tag="PRD"))
    for j in range(4):
        for tap in range(3):
            A(V("v_lshlrev_b32", f"v{224+2*tap}", 16, f"v{200+4*tap+j}")); A(V("v_and_b32", f"v{225+2*tap}", sMASK, f"v{200+4*tap+j}"))
        P += prod_pair(("v224", "v225"), ("v226", "v227"), ("v228", "v229"), "v12", f"v{212+j}", f"v{216+j}", f"v{220+j}", ("v230", "v231"))
    P += prod_store(SGS, 212, tag="PST")
    for e in range(2):
        for i in range(4):
            A(V("v_lshlrev_b32", f"v{232+2*i}", 16, f"v{16+i}") if e == 0 else V("v_and_b32", f"v{233+2*i}", sMASK, f"v{16+i}"))
    for e in range(2):
        mean, var, g, b = (f"v{232+2*i+e}" for i in range(4))
        P += scale_calc(var, g, None)
        A(V("v_fma_f32", b, "-" + mean, var, b))
        A(V("v_mul_f32", var, f2u(-LOG2E / 2), var)); A(V("v_mul_f32", b, f2u(-LOG2E / 2), b))
    A(V("v_lshlrev_b32", "v10", 3, "v0")); A(V("v_add_u32", "v10", STG, "v10"))
    A(DSW("ds_write_b64", "v10", "v[234:235]")); A(DSW("ds_write_b64", "v10", "v[238:239]", 2048, tag="TAB"))
    A(WAITTAG(vm=["W0", "X0"], ds=["TAB"]))
    A(BAR())
    P += stamp()
    P += x_reads(0)

    NM = 72 * NSTEP
    G0 = -(2 * LA + 1)
    gaps = {g: Gap() for g in range(G0, NM)}
    mf = []
    for s in range(NSTEP):
        F0, F1, S0, S1 = quads[s]
        for f in range(36):
            half, n = divmod(f, 18)
            for z in range(2):
                b = z ^ (f & 1)
                j = 2 * n + b
                xb = R("v", ((F0, F1), (S0, S1))[half][b], 4)
                wa = R("a", Wf(36 * s + f), 4)
                ph = phase(s)
                if ph == 1: d = Qt(j); cc = 0 if (s == 0 and half == 0) else d
                elif ph == 2:
                    d = Pt(j) if half == 0 else Qt(j)
                    cc = Qt(j) if (s == 9 and half == 0 and j < 16) else d
                else: d = cc = Rt(j)
                mf.append(MFMA(d, wa, xb, cc))
    for F in range(36 * NSTEP):
        for k, r in enumerate(w_reads(F)):
            gaps[2 * (F - LA) - 1 + k].mem.append(r)
    earlies = []
    def place(dl, g0, pos):
        for (early, pre, d), e in zip(dl, pos):
            g = g0 + 1 + 2 * e
            gaps[g].mem.insert(0, d)
            gaps[g - 2].pre += pre
            earlies.append((g, early))
    barrier = {}
    for s in range(NSTEP):
        g0 = 72 * s - 2 * LA - 1
        if s > 0:
            vm = [f"W{s}"] + ([f"X{s+1}"] if s + 1 < NSTEP else [])
            if s == c["sigwin"]: vm.append("PST")
            barrier[g0] = vm
        if s + 1 < NSTEP:
            pos = (0, 2, LA + 1, LA + 3) if s > 0 else (14, 15, 17, 19)
            for r, e in zip(x_reads(s + 1), pos):
                gaps[g0 + 1 + 2 * e].mem.append(r)
        if s == 0:
            gaps[g0 + 1 + 2 * 14].pre.append(WAITTAG(vm=["X1"]))
            place(w_dmas(2), g0, (7, 9, 11, 13, 16, 18, 20, 22, 24))
            place(x_dmas(3), g0, (26, 28, 30, 32))
            place(x_dmas(4), g0, (34, 36, 38, 40))
        elif s == 1:
            place(w_dmas(3), g0, (6, 8, 10, 12, 14, 16, 18, 20, 22))
            place(x_dmas(5), g0, c["xpos"])
        else:
            if s + 2 < NSTEP: place(w_dmas(s + 2), g0, c["wpos"])
            if s + 4 < NSTEP: place(x_dmas(s + 4), g0, c["xpos"])
        if s == c["sigwin"] and not c["nosignal"]:
            gaps[g0 + 1 + 2 * 4].mem.insert(0, I(f"buffer_atomic_add {vONE}, {vAOFF}, {SD}, 0 offen sc1", "vst", regs(vONE) + regs(vAOFF) + regs(SD), cost=8))
        if s == c["pollwin"]:
            gaps[g0 + 1 + 2 * 19].valu.append(V("v_lshlrev_b32", vPOLL, 7, sH))
            gaps[g0 + 1 + 2 * 22].mem.insert(0, BLD("buffer_load_dword", vPOLL, vPOLL, SD, 0, flags="sc1", tag="POLL"))
        if s == 7:
            barrier[g0].append("POLL")
            gaps[g0].valu.append(V("v_readfirstlane_b32", sT[0], vPOLL))
            gaps[g0 + 1].pre += [S("s_cmp_lt_u32", sT[0], 81), RAW("s_cbranch_scc1 L_slow", "salu"), RAW("L_back:", "label")]

    for g, early in earlies:
        for it in early:
            k = g - 2
            while k > g - 14 and (gaps[k].pre or any(m.kind in ("dma", "vld", "vst") for m in gaps[k].mem)): k -= 2
            if k <= g - 14: k = g - 2
            gaps[k].pre.insert(0, it)

    def fill(stream, lo, hi):
        cap = {g: max(0, 8 - gaps[g].used()) for g in range(lo, hi)}
        demand = sum(i.cost for i in stream)
        extra = max(0.0, (demand - sum(cap.values())) / (hi - lo))
        k, credit = 0, 0.0
        for g in range(lo, hi):
            credit += cap[g] + extra
            first = True
            while k < len(stream) and (credit >= stream[k].cost - (3.99 if extra > 0 else 0) or g == hi - 1):
                it = stream[k]
                if it.kind in ("dsr", "dsw", "vst", "salu"):
                    if not first and g != hi - 1: break
                    if it.kind == "salu": gaps[g].pre.append(it); credit += it.cost
                    elif first: gaps[g].mem.append(it)
                    else: gaps[g].valu.append(it)
                else:
                    gaps[g].valu.append(it); first = False
                credit -= it.cost; k += 1
            if extra == 0: credit = min(credit, 0.0)
        assert k == len(stream)

    L = []
    rd = lambda n: DSR("ds_read_b128", R("v", 240 + 4 * (n % 2), 4), vTAB, 2048 + 64 * n)
    L.append(rd(0))
    for n in range(18):
        if n + 1 < 18: L.append(rd(n + 1))
        for r in range(4): L.append(V("v_mul_f32", f"v{248+r}", vTF, f"v{240+4*(n%2)+r}"))
        for b in range(2):
            for r in range(4): L.append(V("v_accvgpr_write_b32", f"a{4*(2*n+b)+r}", f"v{248+r}"))
    fill(L, 72, 72 * 6 + 30)

    for s in range(9, 27):
        F0, F1, S0, S1 = quads[s]
        L = []
        t = [f"v{TMP+i}" for i in range(6)]
        for E, O in ((F0, S0), (F1, S1)):
            for j in range(4):
                e, o = f"v{E+j}", f"v{O+j}"
                L += [V("v_lshlrev_b32", t[0], 16, e), V("v_and_b32", t[1], sMASK, e), V("v_lshlrev_b32", t[2], 16, o), V("v_and_b32", t[3], sMASK, o),
                      V("v_add_f32", t[4], t[0], t[2]), V("v_add_f32", t[5], t[1], t[3]), V("v_sub_f32", t[2], t[2], t[0]), V("v_sub_f32", t[3], t[3], t[1]),
                      V("v_cvt_pk_bf16_f32", e, t[4], t[5]), V("v_cvt_pk_bf16_f32", o, t[2], t[3])]
        fill(L, 72 * (s - 1), 72 * s)

    L = [I("", "fence")] + stamp()
    prd = lambda n: [DSR("ds_read_b128", R("v", PB + 8 * (n % 6), 4), vTAB, 64 * n), DSR("ds_read_b128", R("v", PB + 8 * (n % 6) + 4, 4), vTAB, 2048 + 64 * n)]
    for n in range(3): L += prd(n)
    dppm = "row_shr:1 row_mask:0xf bank_mask:0xf bound_ctrl:1"
    def bdpp(n):
        return [V("v_sub_f32_dpp", f"v{QB+8*n+r}", f"v{QB+8*n+r}", f"v{QB+8*n+r}", mod=dppm) for r in range(8)]
    L += bdpp(0)
    for n in range(18):
        if n + 3 < 18: L += prd(n + 3)
        if n + 1 < 18: L += bdpp(n + 1)
        pb = PB + 8 * (n % 6)
        for b in range(2):
            for r in (0, 2):
                q = R("v", QB + 8 * n + 4 * b + r, 2)
                L.append(V("v_pk_fma_f32", q, q, R("v", pb + r, 2), R("v", pb + 4 + r, 2)))
        if n >= 8:
            for r in range(8): L.append(V("v_accvgpr_write_b32", f"a{144+8*(n-8)+r}", f"v{QB+8*n+r}"))
    L += stamp()
    gaps[72 * 9 - 1].post = L
    gaps[72 * 27 - 1].post = stamp()

    def stage(pk, dst, b, m, par):
        return ([DSW("ds_write_b64", vS0, R("v", pk, 2)), DSW("ds_write_b64", vS1, R("v", pk + 2, 2)), DSR("ds_read_b128", R("v", dst, 4), vSR)],
                [BST("buffer_store_dwordx4", R("v", dst, 4), vXDMA, SO, sOB[b], par * ROW + 64 * m, flags=c["stflags"])])
    L = []
    pend = []
    gi = 0
    for m in range(9):
        for b in range(2):
            js = (2 * (2 * m) + b, 2 * (2 * m + 1) + b)
            q = [f"v{QB+4*j+r}" for j in js for r in range(4)]
            if m < 4:
                p = [f"v{PB+4*j+r}" for j in js for r in range(4)]
                dst = PB + 4 * js[0]
            else:
                base = PB + 16 * (gi % 2)
                p = [f"v{base+i}" for i in range(8)]
                dst = base + 8
                L += [V("v_accvgpr_read_b32", p[4 * u + r], f"a{144+4*(js[u]-16)+r}") for u in range(2) for r in range(4)]
            e = [f"v{TMP+i}" for i in range(8)]
            L += [V("v_sub_f32", q[i], p[i], q[i]) for i in range(8)]
            L += [V("v_fma_f32", p[i], "2.0", p[i], "-" + q[i]) for i in range(8)]
            L += pend
            L += [V("v_exp_f32", e[i], p[i]) for i in range(8)]
            L += [V("v_fma_f32", e[i], e[i], sC, sC) for i in range(8)]
            L += [V("v_rcp_f32", e[i], e[i]) for i in range(8)]
            L += [V("v_mul_f32", p[i], p[i], e[i]) for i in range(8)]
            L += [V("v_cvt_pk_bf16_f32", e[i], p[2 * i], p[2 * i + 1]) for i in range(4)]
            a, pend = stage(TMP, dst, b, m, 0)
            L += a
            gi += 1
    fill(L, 72 * 27 + 4, NM - 1)

    T = [I("", "fence")] + stamp()
    dppl = "row_shl:1 row_mask:0xf bank_mask:0xf bound_ctrl:1"
    gi = 0
    for m in range(9):
        for b in range(2):
            js = (2 * (2 * m) + b, 2 * (2 * m + 1) + b)
            base = 0 + 16 * (gi % 2)
            p = [f"v{base+i}" for i in range(8)]
            e = [f"v{base+8+i}" for i in range(8)]
            dst = PB + 32 + 4 * (gi % 4)
            T += [V("v_accvgpr_read_b32", p[4 * u + r], f"a{4*js[u]+r}") for u in range(2) for r in range(4)]
            T += [V("v_sub_f32_dpp", p[i], p[i], p[i], mod=dppl) for i in range(8)]
            T += [V("v_pk_add_f32", R("v", base + 4 * u + r, 2), R("v", base + 4 * u + r, 2), R("v", QB + 4 * js[u] + r, 2)) for u in range(2) for r in (0, 2)]
            T += pend
            T += [V("v_exp_f32", e[i], p[i]) for i in range(8)]
            T += [V("v_pk_fma_f32", R("v", base + 8 + i, 2), R("v", base + 8 + i, 2), sC2, sC2) for i in (0, 2, 4, 6)]
            T += [V("v_rcp_f32", e[i], e[i]) for i in range(8)]
            T += [V("v_pk_mul_f32", R("v", base + i, 2), R("v", base + i, 2), R("v", base + 8 + i, 2)) for i in (0, 2, 4, 6)]
            T += [V("v_cvt_pk_bf16_f32", e[i], p[2 * i], p[2 * i + 1]) for i in range(4)]
            a, pend = stage(base + 8, dst, b, m, 1)
            T += a
            gi += 1
    T += pend
    if c["stamps"]:
        T += stamp()
        T.append(I("", "drain"))
        T += stamp()
        T.append(RAW("s_memrealtime s[82:83]", "salu"))
        T.append(RAW("s_waitcnt lgkmcnt(0)", "wait"))
        for k in range(8): T.append(V("v_mov_b32", f"v{k}", f"s{sSTAMP+2*k}"))
        T += [V("v_mov_b32", "v8", "s100"), V("v_mov_b32", "v9", "s82"), RAW("s_getreg_b32 s3, hwreg(HW_REG_XCC_ID)", "salu"), V("v_mov_b32", "v10", "s3"), V("v_mov_b32", "v11", 0)]
        T += [S("s_lshl_b32", sT[0], "s2", 8), S("s_lshl_b32", sT[1], sWAVE, 6), S("s_add_u32", sT[0], sT[0], sT[1]), S("s_add_u32", sT[0], sT[0], 1 << 22),
              S("s_mov_b32", "s18", 1 << 23), V("v_mov_b32", "v12", 0), RAW("s_mov_b64 exec, 1", "salu")]
        for k in range(3): T.append(BST("buffer_store_dwordx4", R("v", 4 * k, 4), "v12", SG, sT[0], 16 * k))

    prog = list(P)
    for g in range(G0, NM):
        if g >= 0: prog.append(mf[g])
        gp = gaps[g]
        if g in barrier:
            prog += [WAITPT(vm=barrier[g]), BAR()]
        elif g % 2 == 1 and g >= -1:
            prog.append(WAITPT())
        prog += gp.pre + gp.mem + gp.valu + gp.post
    prog += T
    last = {}
    for it in prog:
        if id(it) in expect:
            for r, w in expect[id(it)].items(): assert last[r] is w, (it.txt, r, last[r].txt, w.txt)
        for r in it.wr: last[r] = it
    stats = {}
    prog = pad_hazards(insert_waits(prog, stats), stats)

    Z = []
    A = Z.append
    A(RAW("L_slow:", "label"))
    A(S("s_mov_b32", sT[4], c["spin"]))
    A(RAW("L_spin:", "label"))
    A(V("v_lshlrev_b32", vPOLL, 7, sH))
    A(BLD("buffer_load_dword", vPOLL, vPOLL, SD, 0, flags="sc1"))
    A(I("", "drain"))
    A(V("v_readfirstlane_b32", sT[0], vPOLL))
    A(S("s_sub_u32", sT[4], sT[4], 1))
    A(S("s_cmp_ge_u32", sT[0], 81)); A(RAW("s_cbranch_scc1 L_back", "salu"))
    A(S("s_cmp_lg_u32", sT[4], 0)); A(RAW("s_cbranch_scc1 L_spin", "salu"))
    A(S("s_and_b32", sT[4], sWAVE, 1)); A(S("s_mul_i32", sPN, sT[4], 9)); A(S("s_add_u32", sT[4], sPN, 9))
    A(V("v_lshrrev_b32", "v250", 4, vWLO)); A(V("v_and_b32", "v251", 15, "v250")); A(V("v_lshlrev_b32", "v251", 1, "v251"))
    A(V("v_lshrrev_b32", "v250", 4, "v250")); A(V("v_mul_u32_u24", "v250", 8 * ROW, "v250")); A(V("v_add_u32", "v250", "v250", "v251"))
    A(RAW("L_fn:", "label"))
    A(S("s_mov_b32", sPK, 0))
    A(RAW("L_fk:", "label"))
    Z += prod_addr()
    A(V("v_add_u32", "v252", sT[2], "v251"))
    A(GLD("global_load_ushort", "v253", "v252", "s[70:71]")); A(GLD("global_load_ushort", "v254", "v252", "s[72:73]"))
    for tap in range(3):
        for j in range(8):
            A(BLD("buffer_load_ushort", f"v{200+8*tap+j}", "v250", SW, sPSRC))
            A(S("s_add_u32", sPSRC, sPSRC, ROW if j < 7 else TAP - 7 * ROW))
    A(I("", "drain"))
    for i in list(range(200, 224)) + [253, 254]: A(V("v_lshlrev_b32", f"v{i}", 16, f"v{i}"))
    Z += scale_calc("v253", "v254", None)
    A(V("v_mul_f32", "v253", f2u(-LOG2E / 2), "v253"))
    for j in range(4):
        pr = lambda tap: (f"v{200+8*tap+2*j}", f"v{201+8*tap+2*j}")
        Z += prod_pair(pr(0), pr(1), pr(2), "v253", f"v{224+j}", f"v{228+j}", f"v{232+j}", ("v236", "v237"))
    Z += prod_store(SG, 224)
    A(I("", "drain"))
    A(S("s_add_u32", sPK, sPK, 1)); A(S("s_cmp_lt_u32", sPK, 18)); A(RAW("s_cbranch_scc1 L_fk", "salu"))
    A(S("s_add_u32", sPN, sPN, 1)); A(S("s_cmp_lt_u32", sPN, sT[4])); A(RAW("s_cbranch_scc1 L_fn", "salu"))
    A(RAW("s_branch L_back", "salu"))
    Z = pad_hazards(insert_waits(Z))

    head = open("standalone__batchnorm__sampling.s.ref").read().split("; Override")[0]
    o = [head + "; @launch grid=(256,1,1) block=(256,1,1) lds=163840", '.amdgcn_target "amdgcn-amd-amdhsa--gfx950"', ".text", f".globl {NAME}",
         ".p2align 8", f".type {NAME},@function", f"{NAME}:", "s_cmp_lt_u32 s2, 256", "s_cbranch_scc1 L_go", "s_endpgm", "L_go:"]
    o += [i.txt for i in prog]
    o += ["s_endpgm"] + [i.txt for i in Z] + ["L_codeend:", "s_endpgm"]
    o += ['.section .rodata,"a"', ".p2align 6", f".amdhsa_kernel {NAME}", "  .amdhsa_next_free_vgpr 512", "  .amdhsa_next_free_sgpr 102",
          "  .amdhsa_accum_offset 256", "  .amdhsa_group_segment_fixed_size 0", "  .amdhsa_kernarg_size 72", "  .amdhsa_user_sgpr_count 2",
          "  .amdhsa_user_sgpr_kernarg_segment_ptr 1", "  .amdhsa_system_sgpr_workgroup_id_x 1", ".end_amdhsa_kernel", ""]
    return "\n".join(o), stats

if __name__ == "__main__":
    out = sys.argv[1]
    kw = {}
    for a in sys.argv[2:]:
        k, v = a.split("=", 1)
        kw[k] = eval(v)
    txt, stats = gen(**kw)
    open(out, "w").write(txt)
    nl = stats.pop("noplist", [])
    print(out, len(txt), "bytes", txt.count("\n"), "lines", stats)
    for x in nl:
        if x[0] > 450: print("  nop", x)
```

```python
import sys, struct
from asmlib import *

def f2u(x):
    return "0x%08x" % struct.unpack("<I", struct.pack("<f", x))[0]

NAME = "standalone__batchnorm__sampling_kernel"
LOG2E = 1.4426950408889634
ROW = 1152
BATCH = 36864
TAP = 663552
SLOT = 36864
GHALF = 27 * SLOT
XLDS = 3 * SLOT
STG = XLDS + 4 * 12288
NSTEP = 36

SX, SW, SG, SGS, SO, SD = "s[8:11]", "s[12:15]", "s[16:19]", "s[20:23]", "s[24:27]", "s[28:31]"
sWAVE, sH, sRB, sLW, sXB0, sXB1, sWB, sGB, sXL = "s40", "s41", "s42", "s43", "s44", "s45", "s46", "s47", "s48"
sOB = ["s49", "s50"]
sSP1, sGA, sGBb, sGC = "s51", "s52", "s53", "s54"
sMASK = "s55"
sC2, sC = "s[56:57]", "s56"
sPN, sPK, sPSRC, sPDST, sPDST2 = "s58", "s59", "s60", "s61", "s62"
sT = ["s3", "s4", "s5", "s6", "s7"]
sSTAMP = 84
vWLO, vWHI, vXRD, vXDMA, vS0, vS1, vSR, vTAB = "v32", "v33", "v34", "v35", "v36", "v37", "v38", "v39"
TMP = 40
vPOLL = "v46"
QB, PB = 48, 192
vW1, vTR, vTF, vAOFF, vONE = "v192", 193, "v197", "v198", "v199"

def Qt(j): return R("v", QB + 4 * j, 4)
def Pt(j): return R("v", PB + 4 * j, 4) if j < 16 else R("a", 144 + 4 * (j - 16), 4)
def Rt(j): return R("a", 4 * j, 4)
def Wf(F): return 224 + 4 * (F % 8)
def phase(s): return 1 if s < 9 else (2 if s < 27 else 3)

DEF = dict(LA=6, stamps=False, nosignal=False, spin=4000, wpos=(1, 3, 6, 8, 11, 13, 16, 18, 21), xpos=(24, 27, 30, 33),
           gflags="sc1", stflags="sc1", rt=False, diag=None, pf_w=True, pf_code=True, pollwin=5, sigwin=2, xflags="")

class Gap:
    def __init__(self):
        self.pre, self.mem, self.valu, self.post = [], [], [], []
    def used(self):
        return sum(i.cost for i in self.mem + self.valu)

def scale_calc(var, g, t):
    def rnd(r): return [V("v_cvt_pk_bf16_f32", r, r, r), V("v_and_b32", r, sMASK, r)]
    L = [V("v_add_f32", var, f2u(1e-5), var)] + rnd(var)
    L += [V("v_sqrt_f32", var, var)] + rnd(var)
    L += [V("v_rcp_f32", var, var)] + rnd(var)
    L += [V("v_mul_f32", var, g, var)] + rnd(var)
    return L

def prod_pair(a, b, c, sh, o1, o2, o3, t):
    L = []
    for e in range(2):
        L.append(V("v_add_f32", a[e], a[e], c[e]))
    for e in range(2):
        L.append(V("v_mul_f32", a[e], a[e], sh))
    for e in range(2):
        L.append(V("v_mul_f32", c[e], c[e], sh))
    for e in range(2):
        L.append(V("v_fma_f32", t[e], b[e], sh, a[e]))
    for e in range(2):
        L.append(V("v_fma_f32", a[e], "-" + b[e], sh, a[e]))
    for e in range(2):
        L.append(V("v_add_f32", c[e], c[e], c[e]))
    L.append(V("v_cvt_pk_bf16_f32", o1, t[0], t[1]))
    L.append(V("v_cvt_pk_bf16_f32", o2, a[0], a[1]))
    L.append(V("v_cvt_pk_bf16_f32", o3, c[0], c[1]))
    return L

def prod_addr():
    L = [S("s_mul_i32", sPSRC, sPK, 32 * ROW), S("s_lshl_b32", sT[0], sPN, 5), S("s_add_u32", sPSRC, sPSRC, sT[0]),
         S("s_mul_i32", sT[1], sH, 576), S("s_add_u32", sPSRC, sPSRC, sT[1]), S("s_add_u32", sT[2], sT[0], sT[1]),
         S("s_mul_i32", sT[1], sH, GHALF), S("s_lshl_b32", sT[0], sPN, 10), S("s_add_u32", sT[1], sT[1], sT[0]),
         S("s_mul_i32", sPDST, sPK, SLOT), S("s_add_u32", sPDST, sPDST, sT[1]),
         S("s_mul_i32", sPDST2, sPK, SLOT // 2), S("s_add_u32", sPDST2, sPDST2, sT[1]), S("s_add_u32", sPDST2, sPDST2, 18 * SLOT)]
    return L

def prod_store(srd, o, tag=None):
    return [BST("buffer_store_dwordx4", R("v", o, 4), vWLO, srd, sPDST, flags="sc1"),
            S("s_add_u32", sPDST, sPDST, SLOT // 2),
            BST("buffer_store_dwordx4", R("v", o + 4, 4), vWLO, srd, sPDST, flags="sc1"),
            BST("buffer_store_dwordx4", R("v", o + 8, 4), vWLO, srd, sPDST2, flags="sc1", tag=tag)]

def gen(**kw):
    c = dict(DEF); c.update(kw)
    LA = c["LA"]
    nstamp = [0]
    def stamp():
        if not c["stamps"]: return []
        k = nstamp[0]; nstamp[0] += 1
        assert k < 8
        op = "s_memrealtime" if (c["rt"] or c["diag"]) else "s_memtime"
        return [RAW(f"{op} s[{sSTAMP+2*k}:{sSTAMP+2*k+1}]", "salu")]

    def w_dmas(s):
        slot = (s % 3) * SLOT
        out = []
        if phase(s) == 1:
            for m in range(9):
                pre = [S("s_add_u32", "m0", sLW, slot + 960 * m)]
                early = [S("s_add_u32", sSP1, sWB, 64 * s * ROW)] if m == 0 else []
                out.append((early, pre, DMA(vW1, SW, sSP1, 64 * m, tag=f"W{s}")))
        else:
            sr = [sGA, sGBb, sGC]
            for i in range(9):
                pre, early = [], []
                if i % 4 == 0:
                    pre = [S("s_add_u32", "m0", sLW, slot + 1024 * i)]
                    early = [S("s_add_u32", sr[i // 4], sGB, (s - 9) * SLOT + 1024 * i)]
                out.append((early, pre, DMA(vWLO, SG, sr[i // 4], 1024 * (i % 4), tag=f"W{s}", flags=c["gflags"])))
        return link(out)
    def x_dmas(s):
        out = []
        for i in range(4):
            b, sec = i >> 1, i & 1
            if phase(s) == 1: imm = ROW + 128 * s + 64 * sec
            elif phase(s) == 2: imm = ROW * sec + 64 * (s - 9)
            else: imm = 128 * (s - 27) + 64 * sec
            lds = (s % 3) * 4096 + 1024 * i - imm
            op = S("s_add_u32", "m0", sXL, lds) if lds >= 0 else S("s_sub_u32", "m0", sXL, -lds)
            out.append(([], [op], DMA(vXDMA, SX, [sXB0, sXB1][b], imm, tag=f"X{s}", flags=c["xflags"])))
        return link(out)
    expect = {}
    def link(dl):
        cur = {}
        for e, p, d in dl:
            for it in e + p:
                for r in it.wr: cur[r] = it
            expect[id(d)] = {r: it for r, it in cur.items() if r in d.rd}
        return dl
    def flat(dl):
        L = []
        for e, p, d in dl: L += e + p + [d]
        return L

    quads = {}
    st = {0: [0, 4, 8, 12], 1: [16, 20, 24, 28]}
    for s in range(NSTEP):
        q = st[s % 2]
        if s >= 2: q = [q[0], q[2], q[1], q[3]]
        st[s % 2] = q
        quads[s] = q
    def x_reads(s):
        F0, F1, S0, S1 = quads[s]
        return [DSR("ds_read_b128", R("v", r, 4), vXRD, (s % 3) * 4096 + 1024 * i) for i, r in enumerate((F0, S0, F1, S1))]
    def w_reads(F):
        s, f = divmod(F, 36)
        slot = (s % 3) * SLOT
        if phase(s) == 1:
            kk, n = divmod(f, 18)
            m, u = n >> 1, n & 1
            hi = 1 if s % 3 == 2 else 0
            off = (0 if hi else slot) + kk * 18432 + m * 1024
            return [DSR("ds_read_b64_tr_b16", R("a", Wf(F) + 2 * hf, 2), f"v{vTR + 2 * hi + u}", off + 256 * hf) for hf in range(2)]
        off = slot + 1024 * f
        return [DSR("ds_read_b128", R("a", Wf(F), 4), vWLO if off < 65536 else vWHI, off & 65535)]

    P = []
    A = P.append
    P += stamp()
    if c["stamps"]: A(RAW("s_memrealtime s[100:101]", "salu"))
    A(RAW("s_load_dwordx16 s[64:79], s[0:1], 0", "salu"))
    A(RAW("s_load_dwordx2 s[80:81], s[0:1], 64", "salu"))
    A(V("v_lshrrev_b32", "v1", 6, "v0"))
    A(V("v_and_b32", "v2", 63, "v0"))
    A(V("v_readfirstlane_b32", sWAVE, "v1"))
    A(S("s_mov_b32", sMASK, "0xffff0000"))
    A(S("s_mov_b32", "s56", f2u(-LOG2E))); A(S("s_mov_b32", "s57", f2u(-LOG2E)))
    A(S("s_lshr_b32", sH, "s2", 3)); A(S("s_and_b32", sH, sH, 1))
    A(S("s_lshr_b32", sRB, "s2", 4)); A(S("s_lshl_b32", sRB, sRB, 3)); A(S("s_and_b32", sT[0], "s2", 7)); A(S("s_or_b32", sRB, sRB, sT[0]))
    A(V("v_lshlrev_b32", vWLO, 4, "v2"))
    A(V("v_lshrrev_b32", "v3", 2, "v2"))
    A(V("v_and_b32", "v4", 3, "v2"))
    A(V("v_lshrrev_b32", "v5", 4, "v2"))
    A(V("v_and_b32", "v6", 15, "v2"))
    A(S("s_lshl_b32", sT[3], sRB, 2)); A(S("s_add_u32", sT[3], sT[3], sWAVE))
    A(S("s_min_u32", sT[4], sT[3], 323))
    A(S("s_mul_i32", sPK, sT[4], 3641)); A(S("s_lshr_b32", sPK, sPK, 16))
    A(S("s_mul_i32", sPN, sPK, 18)); A(S("s_sub_u32", sPN, sT[4], sPN))
    P += prod_addr()
    A(V("v_lshlrev_b32", "v8", 1, "v6")); A(V("v_add_u32", "v8", sT[2], "v8"))
    A(V("v_lshrrev_b32", "v9", 1, "v2")); A(V("v_mul_u32_u24", "v9", ROW, "v9"))
    A(V("v_and_b32", "v10", 1, "v2")); A(V("v_lshl_add_u32", "v9", "v10", 4, "v9"))
    A(S("s_mul_i32", sLW, sWAVE, 9216))
    A(S("s_mul_i32", sT[0], sH, 576))
    A(V("v_lshlrev_b32", "v11", 2, "v0")); A(V("v_add_u32", "v11", sT[0], "v11")); A(V("v_min_u32", "v11", 1148, "v11"))
    A(S("s_mul_i32", sWB, sWAVE, 16 * ROW)); A(S("s_add_u32", sWB, sWB, sT[0]))
    A(S("s_lshl_b32", sXB0, sRB, 2)); A(S("s_add_u32", sXB0, sXB0, sWAVE)); A(S("s_mul_i32", sXB0, sXB0, 2 * BATCH))
    A(S("s_add_u32", sXB1, sXB0, BATCH))
    A(S("s_add_u32", sOB[0], sXB0, sT[0])); A(S("s_add_u32", sOB[1], sXB1, sT[0]))
    A(S("s_mul_i32", sGB, sH, GHALF)); A(S("s_add_u32", sGB, sGB, sLW))
    A(S("s_mul_i32", sXL, sWAVE, 12288)); A(S("s_add_u32", sXL, sXL, XLDS))
    A(V("v_lshrrev_b32", "v7", 5, "v2")); A(V("v_lshlrev_b32", "v7", 1, "v7")); A(V("v_xor_b32", "v7", "v4", "v7"))
    A(V("v_mul_u32_u24", vW1, ROW, "v3")); A(V("v_lshl_add_u32", vW1, "v7", 4, vW1))
    A(V("v_sub_u32", "v7", 0, "v5")); A(V("v_and_b32", "v7", 3, "v7")); A(V("v_xor_b32", "v7", "v4", "v7"))
    A(V("v_mul_u32_u24", vXDMA, 2 * ROW, "v3")); A(V("v_lshl_add_u32", vXDMA, "v7", 4, vXDMA))
    A(RAW("s_waitcnt lgkmcnt(0)", "wait"))
    def srd(base, lo, nrec):
        return [S("s_mov_b32", f"s{base}", f"s{lo}"), S("s_mov_b32", f"s{base+1}", f"s{lo+1}"),
                S("s_mov_b32", f"s{base+2}", nrec), S("s_mov_b32", f"s{base+3}", "0x20000")]
    P += srd(12, 66, 3 * TAP)
    A(GLD("global_load_ushort", "v12", "v8", "s[70:71]")); A(GLD("global_load_ushort", "v13", "v8", "s[72:73]"))
    for tap in range(3):
        A(S("s_add_u32", "m0", sLW, 2 * SLOT + 1024 * tap))
        if tap: A(S("s_add_u32", sPSRC, sPSRC, TAP))
        A(DMA("v9", SW, sPSRC, tag="PR"))
    for i in range(4):
        A(GLD("global_load_dword", f"v{16+i}", "v11", f"s[{68+2*i}:{69+2*i}]"))
    P += srd(8, 64, 1024 * BATCH)
    P += flat(w_dmas(0)) + flat(x_dmas(0))
    if c["pf_code"]:
        A(RAW("s_getpc_b64 s[82:83]", "salu", wr=["s82", "s83"]))
        A(RAW("L_pc:", "label"))
        A(S("s_lshr_b32", sT[0], "s2", 3)); A(S("s_and_b32", sT[0], sT[0], 3)); A(S("s_lshl_b32", sT[0], sT[0], 15))
        A(V("v_lshlrev_b32", "v14", 7, "v0")); A(V("v_add_u32", "v14", sT[0], "v14"))
        A(S("s_mov_b32", sT[1], "L_codeend-L_pc-4"))
        A(V("v_min_u32", "v14", sT[1], "v14"))
        A(GLD("global_load_dword", "v254", "v14", "s[82:83]"))
    if c["pf_w"]:
        A(S("s_lshr_b32", sT[0], "s2", 3)); A(S("s_mul_i32", sT[0], sT[0], 20736))
        A(V("v_lshlrev_b32", "v15", 7, "v0")); A(V("v_min_u32", "v15", 20736 - 128, "v15"))
        A(BLD("buffer_load_dword", "v255", "v15", SW, sT[0]))
    P += flat(x_dmas(1)) + flat(w_dmas(1)) + flat(x_dmas(2))
    P += srd(16, 80, 2 * GHALF) + srd(20, 80, 2 * GHALF) + srd(24, 76, 1024 * BATCH) + srd(28, 78, 256)
    A(S("s_cmp_lt_u32", sT[3], 324)); A(S("s_cselect_b32", "s22", "s22", 0))
    A(V("v_add_u32", vWHI, 65536, vWLO))
    A(V("v_lshrrev_b32", "v7", 2, "v6")); A(V("v_sub_u32", "v7", 0, "v7")); A(V("v_and_b32", "v7", 3, "v7"))
    A(V("v_xor_b32", "v10", "v5", "v7")); A(V("v_lshlrev_b32", "v10", 4, "v10"))
    A(V("v_lshl_add_u32", vXRD, "v6", 6, "v10")); A(V("v_add_u32", vXRD, sXL, vXRD))
    A(S("s_lshl_b32", sT[0], sWAVE, 10)); A(S("s_add_u32", sT[0], sT[0], STG))
    A(V("v_lshrrev_b32", "v20", 1, "v5")); A(V("v_and_b32", "v21", 1, "v5"))
    A(V("v_xor_b32", "v10", "v20", "v7")); A(V("v_lshlrev_b32", "v10", 4, "v10")); A(V("v_lshl_add_u32", "v10", "v21", 3, "v10"))
    A(V("v_lshl_add_u32", vS0, "v6", 6, "v10")); A(V("v_add_u32", vS0, sT[0], vS0)); A(V("v_xor_b32", vS1, 32, vS0))
    A(V("v_add_u32", vSR, sT[0], vWLO))
    A(V("v_lshlrev_b32", vTAB, 4, "v5")); A(V("v_add_u32", vTAB, STG, vTAB))
    A(V("v_and_b32", "v22", 3, "v3"))
    A(V("v_lshl_add_u32", "v23", "v21", 3, "v22")); A(V("v_lshlrev_b32", "v23", 6, "v23"))
    A(V("v_mul_u32_u24", "v24", 9216, "v20")); A(V("v_add_u32", "v23", "v23", "v24"))
    A(V("v_lshrrev_b32", "v24", 1, "v4")); A(V("v_lshl_add_u32", "v24", "v21", 1, "v24")); A(V("v_lshl_add_u32", "v23", "v24", 4, "v23"))
    A(V("v_and_b32", "v24", 1, "v4")); A(V("v_lshl_add_u32", f"v{vTR}", "v24", 3, "v23"))
    A(V("v_xor_b32", f"v{vTR+1}", 32, f"v{vTR}"))
    A(V("v_add_u32", f"v{vTR+2}", 2 * SLOT, f"v{vTR}")); A(V("v_add_u32", f"v{vTR+3}", 2 * SLOT, f"v{vTR+1}"))
    A(V("v_subrev_u32", "v24", 16, "v6")); A(V("v_cvt_f32_i32", vTF, "v24")); A(V("v_add_f32", vTF, vTF, vTF))
    A(S("s_lshl_b32", sT[0], sH, 7)); A(S("s_cmp_lt_u32", sRB, 81)); A(S("s_cselect_b32", sT[0], sT[0], 4096))
    A(V("v_lshlrev_b32", vAOFF, 8, "v0")); A(V("v_add_u32", vAOFF, sT[0], vAOFF)); A(V("v_mov_b32", vONE, 1))
    A(V("v_lshl_add_u32", "v24", "v5", 3, "v22")); A(V("v_lshlrev_b32", "v24", 5, "v24")); A(V("v_lshl_add_u32", "v24", "v4", 3, "v24"))
    A(S("s_add_u32", sT[0], sLW, 2 * SLOT)); A(V("v_add_u32", "v24", sT[0], "v24"))
    A(V("v_lshlrev_b32", "v12", 16, "v12")); A(V("v_lshlrev_b32", "v13", 16, "v13"))
    P += scale_calc("v12", "v13", None)
    A(V("v_mul_f32", "v12", f2u(-LOG2E / 2), "v12"))
    A(WAITTAG(vm=["PR"]))
    for tap in range(3):
        for hf in range(2):
            A(DSR("ds_read_b64_tr_b16", R("v", 200 + 4 * tap + 2 * hf, 2), "v24", 1024 * tap + 128 * hf, tag="PRD"))
    for j in range(4):
        for tap in range(3):
            A(V("v_lshlrev_b32", f"v{224+2*tap}", 16, f"v{200+4*tap+j}")); A(V("v_and_b32", f"v{225+2*tap}", sMASK, f"v{200+4*tap+j}"))
        P += prod_pair(("v224", "v225"), ("v226", "v227"), ("v228", "v229"), "v12", f"v{212+j}", f"v{216+j}", f"v{220+j}", ("v230", "v231"))
    P += prod_store(SGS, 212, tag="PST")
    for e in range(2):
        for i in range(4):
            A(V("v_lshlrev_b32", f"v{232+2*i}", 16, f"v{16+i}") if e == 0 else V("v_and_b32", f"v{233+2*i}", sMASK, f"v{16+i}"))
    for e in range(2):
        mean, var, g, b = (f"v{232+2*i+e}" for i in range(4))
        P += scale_calc(var, g, None)
        A(V("v_fma_f32", b, "-" + mean, var, b))
        A(V("v_mul_f32", var, f2u(-LOG2E / 2), var)); A(V("v_mul_f32", b, f2u(-LOG2E / 2), b))
    A(V("v_lshlrev_b32", "v10", 3, "v0")); A(V("v_add_u32", "v10", STG, "v10"))
    A(DSW("ds_write_b64", "v10", "v[234:235]")); A(DSW("ds_write_b64", "v10", "v[238:239]", 2048, tag="TAB"))
    A(WAITTAG(vm=["W0", "X0"], ds=["TAB"]))
    A(BAR())
    P += stamp()
    P += x_reads(0)

    NM = 72 * NSTEP
    G0 = -(2 * LA + 1)
    gaps = {g: Gap() for g in range(G0, NM)}
    mf = []
    for s in range(NSTEP):
        F0, F1, S0, S1 = quads[s]
        for f in range(36):
            half, n = divmod(f, 18)
            for z in range(2):
                b = z ^ (f & 1)
                j = 2 * n + b
                xb = R("v", ((F0, F1), (S0, S1))[half][b], 4)
                wa = R("a", Wf(36 * s + f), 4)
                ph = phase(s)
                if ph == 1: d = Qt(j); cc = 0 if (s == 0 and half == 0) else d
                elif ph == 2:
                    d = Pt(j) if half == 0 else Qt(j)
                    cc = Qt(j) if (s == 9 and half == 0 and j < 16) else d
                else: d = cc = Rt(j)
                mf.append(MFMA(d, wa, xb, cc))
    for F in range(36 * NSTEP):
        for k, r in enumerate(w_reads(F)):
            gaps[2 * (F - LA) - 1 + k].mem.append(r)
    earlies = []
    def place(dl, g0, pos):
        for (early, pre, d), e in zip(dl, pos):
            g = g0 + 1 + 2 * e
            gaps[g].mem.insert(0, d)
            gaps[g - 2].pre += pre
            earlies.append((g, early))
    barrier = {}
    for s in range(NSTEP):
        g0 = 72 * s - 2 * LA - 1
        if s > 0:
            vm = [f"W{s}"] + ([f"X{s+1}"] if s + 1 < NSTEP else [])
            if s == c["sigwin"]: vm.append("PST")
            barrier[g0] = vm
        if s + 1 < NSTEP:
            pos = (0, 2, LA + 1, LA + 3) if s > 0 else (14, 15, 17, 19)
            for r, e in zip(x_reads(s + 1), pos):
                gaps[g0 + 1 + 2 * e].mem.append(r)
        if s == 0:
            gaps[g0 + 1 + 2 * 14].pre.append(WAITTAG(vm=["X1"]))
            place(w_dmas(2), g0, (7, 9, 11, 13, 16, 18, 20, 22, 24))
            place(x_dmas(3), g0, (26, 28, 30, 32))
            place(x_dmas(4), g0, (34, 36, 38, 40))
        elif s == 1:
            place(w_dmas(3), g0, (6, 8, 10, 12, 14, 16, 18, 20, 22))
            place(x_dmas(5), g0, c["xpos"])
        else:
            if s + 2 < NSTEP: place(w_dmas(s + 2), g0, c["wpos"])
            if s + 4 < NSTEP: place(x_dmas(s + 4), g0, c["xpos"])
        if s == c["sigwin"] and not c["nosignal"]:
            gaps[g0 + 1 + 2 * 4].mem.insert(0, I(f"buffer_atomic_add {vONE}, {vAOFF}, {SD}, 0 offen sc1", "vst", regs(vONE) + regs(vAOFF) + regs(SD), cost=8))
        if s == c["pollwin"]:
            gaps[g0 + 1 + 2 * 19].valu.append(V("v_lshlrev_b32", vPOLL, 7, sH))
            gaps[g0 + 1 + 2 * 22].mem.insert(0, BLD("buffer_load_dword", vPOLL, vPOLL, SD, 0, flags="sc1", tag="POLL"))
        if s == 7:
            barrier[g0].append("POLL")
            gaps[g0].valu.append(V("v_readfirstlane_b32", sT[0], vPOLL))
            gaps[g0 + 1].pre += [S("s_cmp_lt_u32", sT[0], 81), RAW("s_cbranch_scc1 L_slow", "salu"), RAW("L_back:", "label")]

    for g, early in earlies:
        for it in early:
            k = g - 2
            while k > g - 14 and (gaps[k].pre or any(m.kind in ("dma", "vld", "vst") for m in gaps[k].mem)): k -= 2
            if k <= g - 14: k = g - 2
            gaps[k].pre.insert(0, it)

    def fill(stream, lo, hi):
        cap = {g: max(0, 8 - gaps[g].used()) for g in range(lo, hi)}
        demand = sum(i.cost for i in stream)
        extra = max(0.0, (demand - sum(cap.values())) / (hi - lo))
        k, credit = 0, 0.0
        for g in range(lo, hi):
            credit += cap[g] + extra
            first = True
            while k < len(stream) and (credit >= stream[k].cost - (3.99 if extra > 0 else 0) or g == hi - 1):
                it = stream[k]
                if it.kind in ("dsr", "dsw", "vst", "salu"):
                    if not first and g != hi - 1: break
                    if it.kind == "salu": gaps[g].pre.append(it); credit += it.cost
                    elif first: gaps[g].mem.append(it)
                    else: gaps[g].valu.append(it)
                else:
                    gaps[g].valu.append(it); first = False
                credit -= it.cost; k += 1
            if extra == 0: credit = min(credit, 0.0)
        assert k == len(stream)

    L = []
    rd = lambda n: DSR("ds_read_b128", R("v", 240 + 4 * (n % 2), 4), vTAB, 2048 + 64 * n)
    L.append(rd(0))
    for n in range(18):
        if n + 1 < 18: L.append(rd(n + 1))
        for r in range(4): L.append(V("v_mul_f32", f"v{248+r}", vTF, f"v{240+4*(n%2)+r}"))
        for b in range(2):
            for r in range(4): L.append(V("v_accvgpr_write_b32", f"a{4*(2*n+b)+r}", f"v{248+r}"))
    fill(L, 72, 72 * 6 + 30)

    for s in range(9, 27):
        F0, F1, S0, S1 = quads[s]
        L = []
        t = [f"v{TMP+i}" for i in range(6)]
        for E, O in ((F0, S0), (F1, S1)):
            for j in range(4):
                e, o = f"v{E+j}", f"v{O+j}"
                L += [V("v_lshlrev_b32", t[0], 16, e), V("v_and_b32", t[1], sMASK, e), V("v_lshlrev_b32", t[2], 16, o), V("v_and_b32", t[3], sMASK, o),
                      V("v_add_f32", t[4], t[0], t[2]), V("v_add_f32", t[5], t[1], t[3]), V("v_sub_f32", t[2], t[2], t[0]), V("v_sub_f32", t[3], t[3], t[1]),
                      V("v_cvt_pk_bf16_f32", e, t[4], t[5]), V("v_cvt_pk_bf16_f32", o, t[2], t[3])]
        fill(L, 72 * (s - 1), 72 * s)

    L = [I("", "fence")] + stamp()
    prd = lambda n: [DSR("ds_read_b128", R("v", PB + 8 * (n % 6), 4), vTAB, 64 * n), DSR("ds_read_b128", R("v", PB + 8 * (n % 6) + 4, 4), vTAB, 2048 + 64 * n)]
    for n in range(3): L += prd(n)
    dppm = "row_shr:1 row_mask:0xf bank_mask:0xf bound_ctrl:1"
    def bdpp(n):
        return [V("v_sub_f32_dpp", f"v{QB+8*n+r}", f"v{QB+8*n+r}", f"v{QB+8*n+r}", mod=dppm) for r in range(8)]
    L += bdpp(0)
    for n in range(18):
        if n + 3 < 18: L += prd(n + 3)
        if n + 1 < 18: L += bdpp(n + 1)
        pb = PB + 8 * (n % 6)
        for b in range(2):
            for r in (0, 2):
                q = R("v", QB + 8 * n + 4 * b + r, 2)
                L.append(V("v_pk_fma_f32", q, q, R("v", pb + r, 2), R("v", pb + 4 + r, 2)))
        if n >= 8:
            for r in range(8): L.append(V("v_accvgpr_write_b32", f"a{144+8*(n-8)+r}", f"v{QB+8*n+r}"))
    L += stamp()
    gaps[72 * 9 - 1].post = L
    gaps[72 * 27 - 1].post = stamp()

    def stage(pk, dst, b, m, par):
        return ([DSW("ds_write_b64", vS0, R("v", pk, 2)), DSW("ds_write_b64", vS1, R("v", pk + 2, 2)), DSR("ds_read_b128", R("v", dst, 4), vSR)],
                [BST("buffer_store_dwordx4", R("v", dst, 4), vXDMA, SO, sOB[b], par * ROW + 64 * m, flags=c["stflags"])])
    L = []
    pend = []
    gi = 0
    for m in range(9):
        for b in range(2):
            js = (2 * (2 * m) + b, 2 * (2 * m + 1) + b)
            q = [f"v{QB+4*j+r}" for j in js for r in range(4)]
            if m < 4:
                p = [f"v{PB+4*j+r}" for j in js for r in range(4)]
                dst = PB + 4 * js[0]
            else:
                base = PB + 16 * (gi % 2)
                p = [f"v{base+i}" for i in range(8)]
                dst = base + 8
                L += [V("v_accvgpr_read_b32", p[4 * u + r], f"a{144+4*(js[u]-16)+r}") for u in range(2) for r in range(4)]
            e = [f"v{TMP+i}" for i in range(8)]
            L += [V("v_sub_f32", q[i], p[i], q[i]) for i in range(8)]
            L += [V("v_fma_f32", p[i], "2.0", p[i], "-" + q[i]) for i in range(8)]
            L += pend
            L += [V("v_exp_f32", e[i], p[i]) for i in range(8)]
            L += [V("v_fma_f32", e[i], e[i], sC, sC) for i in range(8)]
            L += [V("v_rcp_f32", e[i], e[i]) for i in range(8)]
            L += [V("v_mul_f32", p[i], p[i], e[i]) for i in range(8)]
            L += [V("v_cvt_pk_bf16_f32", e[i], p[2 * i], p[2 * i + 1]) for i in range(4)]
            a, pend = stage(TMP, dst, b, m, 0)
            L += a
            gi += 1
    fill(L, 72 * 27 + 4, NM - 1)

    T = [I("", "fence")] + stamp()
    dppl = "row_shl:1 row_mask:0xf bank_mask:0xf bound_ctrl:1"
    gi = 0
    for m in range(9):
        for b in range(2):
            js = (2 * (2 * m) + b, 2 * (2 * m + 1) + b)
            base = 0 + 16 * (gi % 2)
            p = [f"v{base+i}" for i in range(8)]
            e = [f"v{base+8+i}" for i in range(8)]
            dst = PB + 32 + 4 * (gi % 4)
            T += [V("v_accvgpr_read_b32", p[4 * u + r], f"a{4*js[u]+r}") for u in range(2) for r in range(4)]
            T += [V("v_sub_f32_dpp", p[i], p[i], p[i], mod=dppl) for i in range(8)]
            T += [V("v_pk_add_f32", R("v", base + 4 * u + r, 2), R("v", base + 4 * u + r, 2), R("v", QB + 4 * js[u] + r, 2)) for u in range(2) for r in (0, 2)]
            T += pend
            T += [V("v_exp_f32", e[i], p[i]) for i in range(8)]
            T += [V("v_pk_fma_f32", R("v", base + 8 + i, 2), R("v", base + 8 + i, 2), sC2, sC2) for i in (0, 2, 4, 6)]
            T += [V("v_rcp_f32", e[i], e[i]) for i in range(8)]
            T += [V("v_pk_mul_f32", R("v", base + i, 2), R("v", base + i, 2), R("v", base + 8 + i, 2)) for i in (0, 2, 4, 6)]
            T += [V("v_cvt_pk_bf16_f32", e[i], p[2 * i], p[2 * i + 1]) for i in range(4)]
            a, pend = stage(base + 8, dst, b, m, 1)
            T += a
            gi += 1
    T += pend
    if c["stamps"]:
        T += stamp()
        T.append(I("", "drain"))
        T += stamp()
        T.append(RAW("s_memrealtime s[82:83]", "salu"))
        T.append(RAW("s_waitcnt lgkmcnt(0)", "wait"))
        if c["diag"]:
            a, b, mult = c["diag"]
            T += [S("s_sub_u32", "s3", f"s{sSTAMP+2*b}", f"s{sSTAMP+2*a}"), S("s_mul_i32", "s3", "s3", mult), S("s_min_u32", "s3", "s3", 20000),
                  RAW("L_diag:", "label"), RAW("s_memrealtime s[4:5]", "salu"), RAW("s_waitcnt lgkmcnt(0)", "wait"),
                  S("s_sub_u32", "s4", "s4", "s82"), S("s_cmp_lt_u32", "s4", "s3"), RAW("s_cbranch_scc1 L_diag", "salu")]
        for k in range(8): T.append(V("v_mov_b32", f"v{k}", f"s{sSTAMP+2*k}"))
        T += [V("v_mov_b32", "v8", "s100"), V("v_mov_b32", "v9", "s82"), RAW("s_getreg_b32 s3, hwreg(HW_REG_XCC_ID)", "salu"), V("v_mov_b32", "v10", "s3"), V("v_mov_b32", "v11", 0)]
        T += [S("s_lshl_b32", sT[0], "s2", 8), S("s_lshl_b32", sT[1], sWAVE, 6), S("s_add_u32", sT[0], sT[0], sT[1]), S("s_add_u32", sT[0], sT[0], 1 << 22),
              S("s_mov_b32", "s18", 1 << 23), V("v_mov_b32", "v12", 0), RAW("s_mov_b64 exec, 1", "salu")]
        for k in range(3): T.append(BST("buffer_store_dwordx4", R("v", 4 * k, 4), "v12", SG, sT[0], 16 * k))

    prog = list(P)
    for g in range(G0, NM):
        if g >= 0: prog.append(mf[g])
        gp = gaps[g]
        if g in barrier:
            prog += [WAITPT(vm=barrier[g]), BAR()]
        elif g % 2 == 1 and g >= -1:
            prog.append(WAITPT())
        prog += gp.pre + gp.mem + gp.valu + gp.post
    prog += T
    last = {}
    for it in prog:
        if id(it) in expect:
            for r, w in expect[id(it)].items(): assert last[r] is w, (it.txt, r, last[r].txt, w.txt)
        for r in it.wr: last[r] = it
    stats = {}
    prog = pad_hazards(insert_waits(prog, stats), stats)

    Z = []
    A = Z.append
    A(RAW("L_slow:", "label"))
    A(S("s_mov_b32", sT[4], c["spin"]))
    A(RAW("L_spin:", "label"))
    A(V("v_lshlrev_b32", vPOLL, 7, sH))
    A(BLD("buffer_load_dword", vPOLL, vPOLL, SD, 0, flags="sc1"))
    A(I("", "drain"))
    A(V("v_readfirstlane_b32", sT[0], vPOLL))
    A(S("s_sub_u32", sT[4], sT[4], 1))
    A(S("s_cmp_ge_u32", sT[0], 81)); A(RAW("s_cbranch_scc1 L_back", "salu"))
    A(S("s_cmp_lg_u32", sT[4], 0)); A(RAW("s_cbranch_scc1 L_spin", "salu"))
    A(S("s_and_b32", sT[4], sWAVE, 1)); A(S("s_mul_i32", sPN, sT[4], 9)); A(S("s_add_u32", sT[4], sPN, 9))
    A(V("v_lshrrev_b32", "v250", 4, vWLO)); A(V("v_and_b32", "v251", 15, "v250")); A(V("v_lshlrev_b32", "v251", 1, "v251"))
    A(V("v_lshrrev_b32", "v250", 4, "v250")); A(V("v_mul_u32_u24", "v250", 8 * ROW, "v250")); A(V("v_add_u32", "v250", "v250", "v251"))
    A(RAW("L_fn:", "label"))
    A(S("s_mov_b32", sPK, 0))
    A(RAW("L_fk:", "label"))
    Z += prod_addr()
    A(V("v_add_u32", "v252", sT[2], "v251"))
    A(GLD("global_load_ushort", "v253", "v252", "s[70:71]")); A(GLD("global_load_ushort", "v254", "v252", "s[72:73]"))
    for tap in range(3):
        for j in range(8):
            A(BLD("buffer_load_ushort", f"v{200+8*tap+j}", "v250", SW, sPSRC))
            A(S("s_add_u32", sPSRC, sPSRC, ROW if j < 7 else TAP - 7 * ROW))
    A(I("", "drain"))
    for i in list(range(200, 224)) + [253, 254]: A(V("v_lshlrev_b32", f"v{i}", 16, f"v{i}"))
    Z += scale_calc("v253", "v254", None)
    A(V("v_mul_f32", "v253", f2u(-LOG2E / 2), "v253"))
    for j in range(4):
        pr = lambda tap: (f"v{200+8*tap+2*j}", f"v{201+8*tap+2*j}")
        Z += prod_pair(pr(0), pr(1), pr(2), "v253", f"v{224+j}", f"v{228+j}", f"v{232+j}", ("v236", "v237"))
    Z += prod_store(SG, 224)
    A(I("", "drain"))
    A(S("s_add_u32", sPK, sPK, 1)); A(S("s_cmp_lt_u32", sPK, 18)); A(RAW("s_cbranch_scc1 L_fk", "salu"))
    A(S("s_add_u32", sPN, sPN, 1)); A(S("s_cmp_lt_u32", sPN, sT[4])); A(RAW("s_cbranch_scc1 L_fn", "salu"))
    A(RAW("s_branch L_back", "salu"))
    Z = pad_hazards(insert_waits(Z))

    head = open("standalone__batchnorm__sampling.s.ref").read().split("; Override")[0]
    o = [head + "; @launch grid=(256,1,1) block=(256,1,1) lds=163840", '.amdgcn_target "amdgcn-amd-amdhsa--gfx950"', ".text", f".globl {NAME}",
         ".p2align 8", f".type {NAME},@function", f"{NAME}:", "s_cmp_lt_u32 s2, 256", "s_cbranch_scc1 L_go", "s_endpgm", "L_go:"]
    o += [i.txt for i in prog]
    o += ["s_endpgm"] + [i.txt for i in Z] + ["L_codeend:", "s_endpgm"]
    o += ['.section .rodata,"a"', ".p2align 6", f".amdhsa_kernel {NAME}", "  .amdhsa_next_free_vgpr 512", "  .amdhsa_next_free_sgpr 102",
          "  .amdhsa_accum_offset 256", "  .amdhsa_group_segment_fixed_size 0", "  .amdhsa_kernarg_size 72", "  .amdhsa_user_sgpr_count 2",
          "  .amdhsa_user_sgpr_kernarg_segment_ptr 1", "  .amdhsa_system_sgpr_workgroup_id_x 1", ".end_amdhsa_kernel", ""]
    return "\n".join(o), stats

if __name__ == "__main__":
    out = sys.argv[1]
    kw = {}
    for a in sys.argv[2:]:
        k, v = a.split("=", 1)
        kw[k] = eval(v)
    txt, stats = gen(**kw)
    open(out, "w").write(txt)
    nl = stats.pop("noplist", [])
    print(out, len(txt), "bytes", txt.count("\n"), "lines", stats)
    for x in nl:
        if x[0] > 450: print("  nop", x)
```

```python
import sys, struct
from asmlib import *

def f2u(x):
    return "0x%08x" % struct.unpack("<I", struct.pack("<f", x))[0]

NAME = "standalone__batchnorm__sampling_kernel"
LOG2E = 1.4426950408889634
ROW = 1152
BATCH = 36864
TAP = 663552
SLOT = 36864
GHALF = 27 * SLOT
XLDS = 3 * SLOT
STG = XLDS + 4 * 12288
NSTEP = 36

SX, SW, SG, SGS, SO, SD = "s[8:11]", "s[12:15]", "s[16:19]", "s[20:23]", "s[24:27]", "s[28:31]"
sWAVE, sH, sRB, sLW, sWB, sGB, sXL = "s40", "s41", "s42", "s43", "s46", "s47", "s48"
sXB = [["s44", "s45"], ["s63", "s83"]]
sSTG = "s82"
sOB = ["s49", "s50"]
sSP1, sGA, sGBb, sGC = "s51", "s52", "s53", "s54"
sMASK = "s55"
sC2, sC = "s[56:57]", "s56"
sPN, sPK, sPSRC, sPDST, sPDST2 = "s58", "s59", "s60", "s61", "s62"
sT = ["s3", "s4", "s5", "s6", "s7"]
sSTAMP = 84
sRT = [100, 32, 34, 36, 38, 64, 66, 68]
vWLO, vWHI, vXDMA, vST, vS0, vS1, vSR, vTAB = "v32", "v33", "v36", "v37", "v38", "v39", "v40", "v41"
vXR = ["v34", "v35"]
TMP = 42
vPOLL = "v252"
QB, PB = 48, 192
vW1, vTR, vTF, vAOFF, vONE = "v192", 193, "v197", "v198", "v199"

def Qt(j): return R("v", QB + 4 * j, 4)
def Pt(j): return R("v", PB + 4 * j, 4) if j < 16 else R("a", 144 + 4 * (j - 16), 4)
def Rt(j): return R("a", 4 * j, 4)
def Wf(F): return 224 + 4 * (F % 8)
def phase(s): return 1 if s < 9 else (2 if s < 27 else 3)

DEF = dict(LA=6, stamps=False, nosignal=False, spin=4000, pos=(1, 3, 6, 8, 11, 13, 16, 18, 21, 24, 27, 30, 33), swap=True, prodr=(12, 110),
           gflags="sc1", stflags="sc1", rt=False, diag=None, abl="", ablr=(0, 0), pf_w=True, pf_code=True, pollwin=5, sigwin=3, xflags="")

class Gap:
    def __init__(self):
        self.pre, self.mem, self.valu, self.post = [], [], [], []
    def used(self):
        return sum(i.cost for i in self.mem + self.valu)

def scale_calc(var, g, t):
    def rnd(r): return [V("v_cvt_pk_bf16_f32", r, r, r), V("v_and_b32", r, sMASK, r)]
    L = [V("v_add_f32", var, f2u(1e-5), var)] + rnd(var)
    L += [V("v_sqrt_f32", var, var)] + rnd(var)
    L += [V("v_rcp_f32", var, var)] + rnd(var)
    L += [V("v_mul_f32", var, g, var)] + rnd(var)
    return L

def prod_pair(a, b, c, sh, o1, o2, o3, t):
    L = []
    for e in range(2):
        L.append(V("v_add_f32", a[e], a[e], c[e]))
    for e in range(2):
        L.append(V("v_mul_f32", a[e], a[e], sh))
    for e in range(2):
        L.append(V("v_mul_f32", c[e], c[e], sh))
    for e in range(2):
        L.append(V("v_fma_f32", t[e], b[e], sh, a[e]))
    for e in range(2):
        L.append(V("v_fma_f32", a[e], "-" + b[e], sh, a[e]))
    for e in range(2):
        L.append(V("v_add_f32", c[e], c[e], c[e]))
    L.append(V("v_cvt_pk_bf16_f32", o1, t[0], t[1]))
    L.append(V("v_cvt_pk_bf16_f32", o2, a[0], a[1]))
    L.append(V("v_cvt_pk_bf16_f32", o3, c[0], c[1]))
    return L

def prod_addr():
    L = [S("s_mul_i32", sPSRC, sPK, 32 * ROW), S("s_lshl_b32", sT[0], sPN, 5), S("s_add_u32", sPSRC, sPSRC, sT[0]),
         S("s_mul_i32", sT[1], sH, 576), S("s_add_u32", sPSRC, sPSRC, sT[1]), S("s_add_u32", sT[2], sT[0], sT[1]),
         S("s_mul_i32", sT[1], sH, GHALF), S("s_lshl_b32", sT[0], sPN, 10), S("s_add_u32", sT[1], sT[1], sT[0]),
         S("s_mul_i32", sPDST, sPK, SLOT), S("s_add_u32", sPDST, sPDST, sT[1]),
         S("s_mul_i32", sPDST2, sPK, SLOT // 2), S("s_add_u32", sPDST2, sPDST2, sT[1]), S("s_add_u32", sPDST2, sPDST2, 18 * SLOT)]
    return L

def prod_store(srd, o, tag=None):
    return [BST("buffer_store_dwordx4", R("v", o, 4), vWLO, srd, sPDST, flags="sc1"),
            BST("buffer_store_dwordx4", R("v", o + 4, 4), vWLO, srd, sPSRC, flags="sc1"),
            BST("buffer_store_dwordx4", R("v", o + 8, 4), vWLO, srd, sPDST2, flags="sc1", tag=tag)]

def gen(**kw):
    c = dict(DEF); c.update(kw)
    LA = c["LA"]
    nstamp = [0]
    def stamp():
        if not c["stamps"]: return []
        k = nstamp[0]; nstamp[0] += 1
        assert k < 8
        return [RAW(f"s_memtime s[{sSTAMP+2*k}:{sSTAMP+2*k+1}]", "salu"), RAW(f"s_memrealtime s[{sRT[k]}:{sRT[k]+1}]", "salu")]

    g0 = lambda s: 72 * s - 2 * LA - 1
    ev = lambda s, e: g0(s) + 1 + 2 * e
    def w_dmas(s):
        slot = (s % 3) * SLOT
        out = []
        if phase(s) == 1:
            for m in range(9):
                early = [S("s_add_u32", sSP1, sWB, 64 * s * ROW)] if m == 0 else []
                out.append([early, (sLW, slot + 960 * m), DMA(vW1, SW, sSP1, 64 * m, tag=f"W{s}")])
        else:
            sr = [sGA, sGBb, sGC]
            for i in range(9):
                early = [S("s_add_u32", sr[i // 4], sGB, (s - 9) * SLOT + 1024 * i)] if i % 4 == 0 else []
                out.append([early, (sLW, slot + 4096 * (i // 4)), DMA(vWLO, SG, sr[i // 4], 1024 * (i % 4), tag=f"W{s}", flags=c["gflags"])])
        return out
    def m0set(spec):
        return S("s_add_u32", "m0", spec[0], spec[1]) if spec[1] >= 0 else S("s_sub_u32", "m0", spec[0], -spec[1])

    quads = {}
    for s in range(NSTEP):
        if s < 9: quads[s] = [0, 4, 8, 12]
        elif s == 9 or s >= 27: quads[s] = [16, 20, 24, 28]
        else:
            q = quads[s - 2]
            quads[s] = [q[0], q[2], q[1], q[3]]

    class Gran:
        def __init__(self, name, b, par, ch, reads):
            self.name, self.b, self.par, self.ch, self.reads, self.slot = name, b, par, ch, reads, None
        def dmas(self):
            imm = self.par * ROW + 128 * self.ch
            return [[[], (self, 1024 * i - imm), DMA(vXDMA, SX, sXB[self.b][i], imm, tag="X" + self.name, flags=c["xflags"])] for i in range(2)]
        def read(self, k):
            _, q, kk = self.reads[k]
            return DSR("ds_read_b128", R("v", q, 4), vXR[kk], 2048 * self.slot)
    gr = {}
    for s in range(NSTEP):
        F0, F1, S0, S1 = quads[s]
        if phase(s) != 2:
            par, ch = (1, s) if s < 9 else (0, s - 27)
            gr[f"A{s}"] = Gran(f"A{s}", 0, par, ch, [(ev(s, 0), F0, 0), (ev(s, LA + 3), S0, 1)])
            gr[f"B{s}"] = Gran(f"B{s}", 1, par, ch, [(ev(s, 2), F1, 0), (ev(s, LA + 4), S1, 1)])
        elif s % 2 == 1:
            ch = (s - 9) // 2
            N0, N1, T0, T1 = quads[s + 1]
            e0, e1 = (4, 5) if s == 9 else (0, 2)
            gr[f"AE{ch}"] = Gran(f"AE{ch}", 0, 0, ch, [(ev(s - 1, e0), F0, 0), (ev(s, 0), N0, 1)])
            gr[f"AO{ch}"] = Gran(f"AO{ch}", 0, 1, ch, [(ev(s - 1, e1), S0, 0), (ev(s, 2), T0, 1)])
            gr[f"BE{ch}"] = Gran(f"BE{ch}", 1, 0, ch, [(ev(s - 1, 17), F1, 0), (ev(s, 17), N1, 1)])
            gr[f"BO{ch}"] = Gran(f"BO{ch}", 1, 1, ch, [(ev(s - 1, 19), S1, 0), (ev(s, 19), T1, 1)])
    gr["PR"] = Gran("PR", 0, 0, 0, [(c["prodr"][0], 0, 0)])
    X = lambda *names: [d for n in names if n in gr for d in gr[n].dmas()]
    busy = [-10**6] * 6
    def alloc(g, when):
        if g.slot is None:
            free = [i for i in range(6) if busy[i] <= when]
            assert free, ("no x slot", g.name, when, busy)
            g.slot = free[0]
            busy[g.slot] = max(r[0] for r in g.reads) + 14
    def resolve(item, when):
        if isinstance(item[1][0], Gran):
            alloc(item[1][0], when)
            item[1] = (sXL, 2048 * item[1][0].slot + item[1][1])
    expect = {}
    def flat(dl):
        L = []
        for it in dl:
            resolve(it, -1000)
            L += it[0] + [m0set(it[1]), it[2]]
        return L
    def w_reads(F):
        s, f = divmod(F, 36)
        slot = (s % 3) * SLOT
        if phase(s) == 1:
            kk, n = divmod(f, 18)
            m, u = n >> 1, n & 1
            hi = 1 if s % 3 == 2 else 0
            off = (0 if hi else slot) + kk * 18432 + m * 1024
            return [DSR("ds_read_b64_tr_b16", R("a", Wf(F) + 2 * hf, 2), f"v{vTR + 2 * hi + u}", off + 256 * hf) for hf in range(2)]
        off = slot + 1024 * f
        return [DSR("ds_read_b128", R("a", Wf(F), 4), vWLO if off < 65536 else vWHI, off & 65535)]

    P = []
    A = P.append
    P += stamp()
    A(RAW("s_load_dwordx4 s[64:67], s[0:1], 0", "salu"))
    if c["pf_code"]:
        A(RAW("s_getpc_b64 s[4:5]", "salu", wr=["s4", "s5"]))
        A(RAW("L_pc:", "label"))
        A(S("s_lshr_b32", "s3", "s2", 3)); A(S("s_mul_i32", "s3", "s3", 20 * 128))
        A(V("v_min_u32", "v14", 19, "v0")); A(V("v_lshl_add_u32", "v14", "v14", 7, "s3"))
        A(V("v_min_u32", "v14", "L_codeend-L_pc-4", "v14"))
        A(GLD("global_load_dword", "v254", "v14", "s[4:5]"))
    A(RAW("s_load_dwordx8 s[68:75], s[0:1], 16", "salu"))
    A(RAW("s_load_dwordx4 s[76:79], s[0:1], 48", "salu"))
    A(RAW("s_load_dwordx2 s[80:81], s[0:1], 64", "salu"))
    A(V("v_lshrrev_b32", "v1", 6, "v0"))
    A(V("v_and_b32", "v2", 63, "v0"))
    A(V("v_readfirstlane_b32", sWAVE, "v1"))
    A(S("s_bfe_u32", sH, "s2", "0x10003"))
    A(S("s_lshr_b32", sRB, "s2", 4)); A(S("s_and_b32", sT[0], "s2", 7)); A(S("s_lshl3_add_u32", sRB, sRB, sT[0]))
    A(V("v_lshrrev_b32", "v3", 2, "v2"))
    A(V("v_and_b32", "v4", 3, "v2"))
    A(V("v_lshrrev_b32", "v5", 4, "v2"))
    A(V("v_and_b32", "v6", 15, "v2"))
    A(S("s_lshl2_add_u32", sT[3], sRB, sWAVE))
    A(S("s_mul_i32", sT[4], sT[3], 2 * BATCH))
    A(S("s_mul_i32", sT[1], sH, BATCH if c["swap"] else 0))
    A(S("s_add_u32", sXB[0][0], sT[4], sT[1])); A(S("s_sub_u32", sXB[1][0], BATCH, sT[1])); A(S("s_add_u32", sXB[1][0], sXB[1][0], sT[4]))
    A(S("s_add_u32", sXB[0][1], sXB[0][0], 16 * ROW)); A(S("s_add_u32", sXB[1][1], sXB[1][0], 16 * ROW))
    A(S("s_mul_i32", sXL, sWAVE, 12288)); A(S("s_add_u32", sXL, sXL, XLDS))
    A(S("s_mul_i32", sLW, sWAVE, 9216))
    A(S("s_mul_i32", sT[0], sH, 576))
    A(S("s_mul_i32", sWB, sWAVE, 16 * ROW)); A(S("s_add_u32", sWB, sWB, sT[0]))
    A(S("s_add_u32", sOB[0], sXB[0][0], sT[0])); A(S("s_add_u32", sOB[1], sXB[1][0], sT[0]))
    A(V("v_lshrrev_b32", "v7", 3, "v2")); A(V("v_mul_u32_u24", vXDMA, 2 * ROW, "v7"))
    A(V("v_and_b32", "v7", 7, "v2")); A(V("v_lshlrev_b32", "v8", 1, "v5")); A(V("v_xor_b32", "v7", "v7", "v8")); A(V("v_lshl_add_u32", vXDMA, "v7", 4, vXDMA))
    A(V("v_and_b32", "v7", 2, "v5")); A(V("v_xor_b32", "v7", "v4", "v7"))
    A(V("v_mul_u32_u24", vW1, ROW, "v3")); A(V("v_lshl_add_u32", vW1, "v7", 4, vW1))
    A(S("s_min_u32", sT[4], sT[3], 323))
    A(S("s_mul_i32", sPK, sT[4], 3641)); A(S("s_lshr_b32", sPK, sPK, 16))
    A(S("s_mul_i32", sPN, sPK, 18)); A(S("s_sub_u32", sPN, sT[4], sPN))
    P += prod_addr()
    A(V("v_lshl_add_u32", "v8", "v6", 1, sT[2]))
    A(V("v_lshrrev_b32", "v9", 1, "v2")); A(V("v_mul_u32_u24", "v9", ROW, "v9"))
    A(V("v_and_b32", "v10", 1, "v2")); A(V("v_lshl_add_u32", "v9", "v10", 4, "v9"))
    A(S("s_lshl_b32", sSTG, sWAVE, 10)); A(S("s_add_u32", sSTG, sSTG, STG))
    def srd(base, lo, nrec):
        return [S("s_mov_b32", f"s{base}", f"s{lo}"), S("s_mov_b32", f"s{base+1}", f"s{lo+1}"),
                S("s_mov_b32", f"s{base+2}", nrec), S("s_mov_b32", f"s{base+3}", "0x20000")]
    def pfw(dst, row0, nl):
        return [S("s_lshr_b32", sT[0], "s2", 3), S("s_lshl2_add_u32", sT[0], sT[0], sWAVE), S("s_mul_i32", sT[0], sT[0], nl * 128), S("s_add_u32", sT[0], sT[0], row0 * ROW),
                V("v_lshlrev_b32", dst, 3, vWLO), V("v_min_u32", dst, (nl - 1) * 128, dst), BLD("buffer_load_dword", dst, dst, SW, sT[0])]
    A(V("v_lshlrev_b32", vWLO, 4, "v2"))
    A(RAW("s_waitcnt lgkmcnt(0)", "wait"))
    P += srd(8, 64, 1024 * BATCH) + srd(12, 66, 3 * TAP)
    if c["pf_w"]: P += pfw("v255", 64, 9)
    P += flat(X("A0", "B0")) + flat(w_dmas(0))
    A(GLD("global_load_ushort", "v238", "v8", "s[70:71]")); A(GLD("global_load_ushort", "v239", "v8", "s[72:73]"))
    alloc(gr["PR"], -1000)
    for tap in range(3):
        A(m0set((sXL, 2048 * gr["PR"].slot + 1024 * tap) if tap < 2 else (sSTG, 0)))
        if tap: A(S("s_add_u32", sPSRC, sPSRC, TAP))
        A(DMA("v9", SW, sPSRC, tag="XPR"))
    A(S("s_add_u32", sPSRC, sPDST, SLOT // 2))
    late = flat(X("A1", "B1")) + flat(w_dmas(1))
    K = []
    A = K.append
    A(S("s_mov_b32", sMASK, "0xffff0000"))
    A(S("s_mov_b32", "s56", f2u(-LOG2E))); A(S("s_mov_b32", "s57", f2u(-LOG2E)))
    A(S("s_mul_i32", sGB, sH, GHALF)); A(S("s_add_u32", sGB, sGB, sLW))
    K += srd(16, 80, 2 * GHALF) + srd(20, 80, 2 * GHALF) + srd(24, 76, 1024 * BATCH) + srd(28, 78, 256)
    A(S("s_cmp_lt_u32", sT[3], 324)); A(S("s_cselect_b32", "s22", "s22", 0))
    A(V("v_add_u32", vWHI, 65536, vWLO))
    A(V("v_and_b32", "v7", 6, "v6")); A(V("v_xor_b32", "v7", "v5", "v7")); A(V("v_lshlrev_b32", "v7", 4, "v7"))
    A(V("v_lshl_add_u32", "v7", "v6", 7, "v7")); A(V("v_add_u32", vXR[0], sXL, "v7")); A(V("v_xor_b32", vXR[1], 64, vXR[0]))
    A(V("v_sub_u32", "v7", 0, "v5")); A(V("v_and_b32", "v7", 3, "v7")); A(V("v_xor_b32", "v7", "v4", "v7"))
    A(V("v_mul_u32_u24", vST, 2 * ROW, "v3")); A(V("v_lshl_add_u32", vST, "v7", 4, vST))
    A(V("v_lshrrev_b32", "v7", 2, "v6")); A(V("v_sub_u32", "v7", 0, "v7")); A(V("v_and_b32", "v7", 3, "v7"))
    A(V("v_lshrrev_b32", "v20", 1, "v5")); A(V("v_and_b32", "v21", 1, "v5"))
    A(V("v_xor_b32", "v10", "v20", "v7")); A(V("v_lshlrev_b32", "v10", 4, "v10")); A(V("v_lshl_add_u32", "v10", "v21", 3, "v10"))
    A(V("v_lshl_add_u32", vS0, "v6", 6, "v10")); A(V("v_add_u32", vS0, sSTG, vS0)); A(V("v_xor_b32", vS1, 32, vS0))
    A(V("v_add_u32", vSR, sSTG, vWLO))
    A(V("v_lshlrev_b32", vTAB, 4, "v5")); A(V("v_add_u32", vTAB, STG, vTAB))
    A(V("v_and_b32", "v22", 3, "v3"))
    A(V("v_lshl_add_u32", "v23", "v21", 3, "v22")); A(V("v_lshlrev_b32", "v23", 6, "v23"))
    A(V("v_mul_u32_u24", "v24", 9216, "v20")); A(V("v_add_u32", "v23", "v23", "v24"))
    A(V("v_lshrrev_b32", "v24", 1, "v4")); A(V("v_lshl_add_u32", "v24", "v21", 1, "v24")); A(V("v_lshl_add_u32", "v23", "v24", 4, "v23"))
    A(V("v_and_b32", "v24", 1, "v4")); A(V("v_lshl_add_u32", f"v{vTR}", "v24", 3, "v23"))
    A(V("v_xor_b32", f"v{vTR+1}", 32, f"v{vTR}"))
    A(V("v_add_u32", f"v{vTR+2}", 2 * SLOT, f"v{vTR}")); A(V("v_add_u32", f"v{vTR+3}", 2 * SLOT, f"v{vTR+1}"))
    A(V("v_subrev_u32", "v24", 16, "v6")); A(V("v_cvt_f32_i32", vTF, "v24")); A(V("v_add_f32", vTF, vTF, vTF))
    A(S("s_lshl_b32", sT[0], sH, 7)); A(V("v_mov_b32", vPOLL, sT[0])); A(S("s_cmp_lt_u32", sRB, 81)); A(S("s_cselect_b32", sT[0], sT[0], 4096))
    A(V("v_lshl_add_u32", vAOFF, "v0", 8, sT[0])); A(V("v_mov_b32", vONE, 1))
    A(V("v_lshl_add_u32", "v24", "v5", 3, "v22")); A(V("v_lshlrev_b32", "v24", 5, "v24")); A(V("v_lshl_add_u32", "v24", "v4", 3, "v24"))
    A(V("v_add_u32", "v25", sSTG, "v24")); A(V("v_add_u32", "v24", sXL, "v24"))
    A(S("s_mul_i32", sT[0], sH, 576))
    A(V("v_lshl_add_u32", "v26", "v0", 2, sT[0])); A(V("v_min_u32", "v26", 1148, "v26"))
    A(V("v_lshlrev_b32", "v27", 3, "v0")); A(V("v_add_u32", "v27", STG, "v27"))
    P += K + late
    P += [WAITTAG(vm=["W0", "XA0", "XB0"]), BAR()]
    P += stamp()

    PROD = []
    A = PROD.append
    for tap in range(3):
        for hf in range(2):
            A(DSR("ds_read_b64_tr_b16", R("v", 200 + 4 * tap + 2 * hf, 2), "v24" if tap < 2 else "v25", (2048 * gr["PR"].slot + 1024 * tap if tap < 2 else 0) + 128 * hf))
    A(V("v_lshlrev_b32", "v238", 16, "v238")); A(V("v_lshlrev_b32", "v239", 16, "v239"))
    PROD += scale_calc("v238", "v239", None)
    A(V("v_mul_f32", "v238", f2u(-LOG2E / 2), "v238"))
    for j in range(4):
        for tap in range(3):
            A(V("v_lshlrev_b32", f"v{224+2*tap}", 16, f"v{200+4*tap+j}")); A(V("v_and_b32", f"v{225+2*tap}", sMASK, f"v{200+4*tap+j}"))
        PROD += prod_pair(("v224", "v225"), ("v226", "v227"), ("v228", "v229"), "v238", f"v{212+j}", f"v{216+j}", f"v{220+j}", ("v230", "v231"))
    PROD += prod_store(SGS, 212, tag="PST")
    TABL = [GLD("global_load_dword", f"v{16+i}", "v26", f"s[{68+2*i}:{69+2*i}]", tag="TL") for i in range(4)]
    TABC = []
    A = TABC.append
    for e in range(2):
        for i in range(4):
            A(V("v_lshlrev_b32", f"v{232+2*i}", 16, f"v{16+i}") if e == 0 else V("v_and_b32", f"v{233+2*i}", sMASK, f"v{16+i}"))
    for e in range(2):
        mean, var, g, b = (f"v{232+2*i+e}" for i in range(4))
        TABC += scale_calc(var, g, None)
        A(V("v_fma_f32", b, "-" + mean, var, b))
        A(V("v_mul_f32", var, f2u(-LOG2E / 2), var)); A(V("v_mul_f32", b, f2u(-LOG2E / 2), b))
    A(DSW("ds_write_b64", "v27", "v[234:235]")); A(DSW("ds_write_b64", "v27", "v[238:239]", 2048, tag="TAB"))

    NM = 72 * NSTEP
    G0 = -(2 * LA + 1)
    gaps = {g: Gap() for g in range(G0, NM)}
    mf = []
    for s in range(NSTEP):
        F0, F1, S0, S1 = quads[s]
        for f in range(36):
            half, n = divmod(f, 18)
            for z in range(2):
                b = z ^ (f & 1)
                j = 2 * n + b
                xb = R("v", ((F0, F1), (S0, S1))[half][b], 4)
                wa = R("a", Wf(36 * s + f), 4)
                ph = phase(s)
                if ph == 1: d = Qt(j); cc = 0 if (s == 0 and half == 0) else d
                elif ph == 2:
                    d = Pt(j) if half == 0 else Qt(j)
                    cc = Qt(j) if (s == 9 and half == 0 and j < 16) else d
                else: d = cc = Rt(j)
                mf.append(MFMA(d, wa, xb, cc))
    for F in range(36 * NSTEP):
        for k, r in enumerate(w_reads(F)):
            gaps[2 * (F - LA) - 1 + k].mem.append(r)
    earlies = []
    isvm = lambda g: any(m.kind in ("dma", "vld", "vst") for m in gaps[g].mem)
    cur = [None]
    sof = {}
    def place(dl, s, pos):
        assert len(pos) >= len(dl), (s, len(dl))
        for it, e in zip(dl, pos):
            g = ev(s, e)
            resolve(it, g)
            assert not isvm(g)
            gaps[g].mem.insert(0, it[2])
            if cur[0] is None or cur[0][0] != it[1]:
                cur[0] = (it[1], m0set(it[1]))
                gaps[g - 1 if any(m.kind == "dma" for m in gaps[g - 2].mem) else g - 2].pre.append(cur[0][1])
            expect[id(it[2])] = {"m0": cur[0][1]}
            for x in it[0]:
                for r in x.wr: sof[r] = x
            for r in it[2].rd & set(sof): expect[id(it[2])][r] = sof[r]
            earlies.append((g, it[0]))
    barrier, waits = {}, {}
    pos = c["pos"]
    pos15 = (1, 3, 5, 8, 10, 12, 15, 17, 19, 22, 24, 27, 29, 32, 34)
    for s in range(NSTEP):
        W = w_dmas(s + 2) if s + 2 < NSTEP else []
        if s > 0: barrier[g0(s)] = ([f"W{s}"], [])
        if s == 0: place(X("A2") + W + X("B2", "A3"), s, tuple(range(7, 36, 2)))
        elif s == 5: place(W + X("B7", "A8", "AE0"), s, pos15)
        elif s == 6: place(W + X("B8", "AO0"), s, pos)
        elif s == 7: place(W[:8] + X("BE0", "BO0") + W[8:], s, pos)
        elif s == 8: place(W + X("AE1", "AO1"), s, pos)
        elif 9 <= s <= 23 and s % 2 == 1: place(W[:4] + X(f"BE{(s-7)//2}", f"BO{(s-7)//2}") + W[4:], s, pos)
        elif 9 <= s <= 23: place(X(f"AE{(s-6)//2}", f"AO{(s-6)//2}") + W, s, pos)
        else: place(W + X(f"B{s+2}", f"A{s+3}"), s, pos)
        if s == 0 and c["pf_w"]:
            pf = pfw("v253", 192, 27)
            for k, it in enumerate(pf[:4]): gaps[1 + 2 * k].pre.append(it)
            gaps[9].valu.append(pf[4]); gaps[11].valu.append(pf[5]); gaps[ev(0, 12)].mem.insert(0, pf[6])
        if s == 0:
            for it, e in zip(TABL, (18, 20, 22, 24)): gaps[ev(s, e)].mem.insert(0, it)
        if s == 3: barrier[g0(s)][1].append("TAB")
        if s == c["sigwin"]:
            barrier[g0(s)][0].append("PST")
            if not c["nosignal"]:
                gaps[ev(s, 4)].mem.insert(0, I(f"buffer_atomic_add {vONE}, {vAOFF}, {SD}, 0 offen sc1", "vst", regs(vONE) + regs(vAOFF) + regs(SD), cost=8))
        if s == c["pollwin"]:
            gaps[ev(s, 25)].mem.insert(0, BLD("buffer_load_dword", vPOLL, vPOLL, SD, 0, flags="sc1", tag="POLL"))
        if s == 7:
            barrier[g0(s)][0].append("POLL")
            gaps[g0(s)].valu.append(V("v_readfirstlane_b32", sT[0], vPOLL))
            gaps[g0(s) + 1].pre += [S("s_cmp_lt_u32", sT[0], 81), RAW("s_cbranch_scc1 L_slow", "salu"), RAW("L_back:", "label")]
    for gn in gr.values():
        assert gn.slot is not None, gn.name
        g = gn.reads[0][0] - 1
        near = [x for x in barrier if 0 <= g - x <= 12]
        if near: barrier[near[0]][0].append("X" + gn.name)
        elif g >= 0: waits.setdefault(g, []).append("X" + gn.name)
        if gn.name != "PR":
            gn.rd = [gn.read(k) for k in range(2)]
            for k in range(2): gaps[gn.reads[k][0]].mem.append(gn.rd[k])
    for s in range(NSTEP):
        if phase(s) != 2:
            for i in range(72):
                half, b = i // 36, (i & 1) ^ ((i >> 1) & 1)
                w = gr["AB"[b] + str(s)].rd[half]
                expect[id(mf[72 * s + i])] = {r: w for r in w.wr}
                assert w.wr <= mf[72 * s + i].rd

    for g, early in earlies:
        for it in early:
            k = g - 2
            while k > g - 14 and (gaps[k].pre or isvm(k)): k -= 2
            if k <= g - 14: k = g - 2
            gaps[k].pre.insert(0, it)

    def fill(stream, lo, hi):
        cap = {g: max(0, 8 - gaps[g].used()) for g in range(lo, hi)}
        demand = sum(i.cost for i in stream)
        extra = max(0.0, (demand - sum(cap.values())) / (hi - lo))
        k, credit = 0, 0.0
        for g in range(lo, hi):
            credit += cap[g] + extra
            first = not gaps[g].valu
            fresh = True
            while k < len(stream):
                it = stream[k]
                assert it.kind != "salu"
                need = it.cost - 3.99 if extra > 0 else (min(it.cost, 4) if fresh else it.cost)
                if credit < need and g != hi - 1: break
                if it.kind in ("dsr", "dsw", "vst"):
                    if not first and g != hi - 1: break
                    (gaps[g].mem if first else gaps[g].valu).append(it)
                else:
                    gaps[g].valu.append(it); first = False
                credit -= it.cost; k += 1; fresh = False
            if extra == 0: credit = min(credit, 0.0)
        assert k == len(stream)
        fills.append((lo, hi, demand, sum(cap.values())))

    fills = []
    fill(PROD, c["prodr"][0], c["prodr"][1])
    fill(TABC, g0(2) + 2, g0(3) - 8)
    L = []
    rd = lambda n: DSR("ds_read_b128", R("v", 240 + 4 * (n % 2), 4), vTAB, 2048 + 64 * n)
    L.append(rd(0))
    for n in range(18):
        if n + 1 < 18: L.append(rd(n + 1))
        for r in range(4): L.append(V("v_mul_f32", f"v{248+r}", vTF, f"v{240+4*(n%2)+r}"))
        for b in range(2):
            for r in range(4): L.append(V("v_accvgpr_write_b32", f"a{4*(2*n+b)+r}", f"v{248+r}"))
    fill(L, g0(3) + 2, 72 * 8 - 10)

    for s in range(9, 27):
        F0, F1, S0, S1 = quads[s]
        L = []
        t = [f"v{TMP+i}" for i in range(6)]
        for b, (E, O) in enumerate(((F0, S0), (F1, S1))):
            for j in range(4):
                e, o = f"v{E+j}", f"v{O+j}"
                n0 = len(L)
                L += [V("v_lshlrev_b32", t[0], 16, e), V("v_and_b32", t[1], sMASK, e), V("v_lshlrev_b32", t[2], 16, o), V("v_and_b32", t[3], sMASK, o),
                      V("v_add_f32", t[4], t[0], t[2]), V("v_add_f32", t[5], t[1], t[3]), V("v_sub_f32", t[2], t[2], t[0]), V("v_sub_f32", t[3], t[3], t[1]),
                      V("v_cvt_pk_bf16_f32", e, t[4], t[5]), V("v_cvt_pk_bf16_f32", o, t[2], t[3])]
                nm = lambda p: gr["AB"[b] + p + str((s - 9) // 2)].rd[(s - 9) % 2]
                expect[id(L[n0])] = {e: nm("E")}; expect[id(L[n0 + 2])] = {o: nm("O")}
                for i in range(72):
                    if (i & 1) ^ ((i >> 1) & 1) == b:
                        expect.setdefault(id(mf[72 * s + i]), {})[e if i < 36 else o] = L[n0 + 8 + i // 36]
        fill(L, 72 * (s - 1) + (6 if s == 9 else 0), 72 * s)

    L = [I("", "fence")] + stamp()
    prd = lambda n: [DSR("ds_read_b128", R("v", PB + 8 * (n % 6), 4), vTAB, 64 * n), DSR("ds_read_b128", R("v", PB + 8 * (n % 6) + 4, 4), vTAB, 2048 + 64 * n)]
    for n in range(3): L += prd(n)
    dppm = "row_shr:1 row_mask:0xf bank_mask:0xf bound_ctrl:1"
    def bdpp(n):
        return [V("v_sub_f32_dpp", f"v{QB+8*n+r}", f"v{QB+8*n+r}", f"v{QB+8*n+r}", mod=dppm) for r in range(8)]
    L += bdpp(0)
    for n in range(18):
        if n + 3 < 18: L += prd(n + 3)
        if n + 1 < 18: L += bdpp(n + 1)
        pb = PB + 8 * (n % 6)
        for b in range(2):
            for r in (0, 2):
                q = R("v", QB + 8 * n + 4 * b + r, 2)
                L.append(V("v_pk_fma_f32", q, q, R("v", pb + r, 2), R("v", pb + 4 + r, 2)))
        if n >= 8:
            for r in range(8): L.append(V("v_accvgpr_write_b32", f"a{144+8*(n-8)+r}", f"v{QB+8*n+r}"))
    L += stamp()
    gaps[72 * 9 - 1].post = L
    gaps[72 * 27 - 1].post = stamp()

    def stage(pk, dst, b, m, par):
        return ([DSW("ds_write_b64", vS0, R("v", pk, 2)), DSW("ds_write_b64", vS1, R("v", pk + 2, 2)), DSR("ds_read_b128", R("v", dst, 4), vSR)],
                [BST("buffer_store_dwordx4", R("v", dst, 4), vST, SO, sOB[b], par * ROW + 64 * m, flags=c["stflags"])])
    L = []
    pend = []
    gi = 0
    for m in range(9):
        for b in range(2):
            js = (2 * (2 * m) + b, 2 * (2 * m + 1) + b)
            q = [f"v{QB+4*j+r}" for j in js for r in range(4)]
            if m < 4:
                p = [f"v{PB+4*j+r}" for j in js for r in range(4)]
                dst = PB + 4 * js[0]
            else:
                base = PB + 16 * (gi % 2)
                p = [f"v{base+i}" for i in range(8)]
                dst = base + 8
                L += [V("v_accvgpr_read_b32", p[4 * u + r], f"a{144+4*(js[u]-16)+r}") for u in range(2) for r in range(4)]
            eb = 8 * (gi % 2)
            e = [f"v{eb+i}" for i in range(8)]
            L += [V("v_sub_f32", q[i], p[i], q[i]) for i in range(8)]
            L += [V("v_fma_f32", p[i], "2.0", p[i], "-" + q[i]) for i in range(8)]
            L += pend
            L += [V("v_exp_f32", e[i], p[i]) for i in range(8)]
            L += [V("v_fma_f32", e[i], e[i], sC, sC) for i in range(8)]
            L += [V("v_rcp_f32", e[i], e[i]) for i in range(8)]
            L += [V("v_mul_f32", p[i], p[i], e[i]) for i in range(8)]
            L += [V("v_cvt_pk_bf16_f32", e[i], p[2 * i], p[2 * i + 1]) for i in range(4)]
            a, pend = stage(eb, dst, b, m, 0)
            L += a
            gi += 1
    fill(L, 72 * 27 + 4, NM - 1)

    T = [I("", "fence")] + stamp()
    dppl = "row_shl:1 row_mask:0xf bank_mask:0xf bound_ctrl:1"
    gi = 0
    for m in range(9):
        for b in range(2):
            js = (2 * (2 * m) + b, 2 * (2 * m + 1) + b)
            base = 0 + 16 * (gi % 2)
            p = [f"v{base+i}" for i in range(8)]
            e = [f"v{base+8+i}" for i in range(8)]
            dst = PB + 32 + 4 * (gi % 4)
            T += [V("v_accvgpr_read_b32", p[4 * u + r], f"a{4*js[u]+r}") for u in range(2) for r in range(4)]
            T += [V("v_sub_f32_dpp", p[i], p[i], p[i], mod=dppl) for i in range(8)]
            T += [V("v_pk_add_f32", R("v", base + 4 * u + r, 2), R("v", base + 4 * u + r, 2), R("v", QB + 4 * js[u] + r, 2)) for u in range(2) for r in (0, 2)]
            T += pend
            T += [V("v_exp_f32", e[i], p[i]) for i in range(8)]
            T += [V("v_pk_fma_f32", R("v", base + 8 + i, 2), R("v", base + 8 + i, 2), sC2, sC2) for i in (0, 2, 4, 6)]
            T += [V("v_rcp_f32", e[i], e[i]) for i in range(8)]
            T += [V("v_pk_mul_f32", R("v", base + i, 2), R("v", base + i, 2), R("v", base + 8 + i, 2)) for i in (0, 2, 4, 6)]
            T += [V("v_cvt_pk_bf16_f32", e[i], p[2 * i], p[2 * i + 1]) for i in range(4)]
            a, pend = stage(base + 8, dst, b, m, 1)
            T += a
            gi += 1
    T += pend
    if c["stamps"]:
        T += stamp()
        T.append(I("", "drain"))
        T += stamp()
        T.append(RAW("s_waitcnt lgkmcnt(0)", "wait"))
        if c["diag"]:
            a, b, mult = c["diag"]
            T += [S("s_sub_u32", "s3", f"s{sRT[b]}", f"s{sRT[a]}"), S("s_mul_i32", "s3", "s3", mult), S("s_min_u32", "s3", "s3", 20000),
                  RAW("L_diag:", "label"), RAW("s_memrealtime s[4:5]", "salu"), RAW("s_waitcnt lgkmcnt(0)", "wait"),
                  S("s_sub_u32", "s4", "s4", f"s{sRT[7]}"), S("s_cmp_lt_u32", "s4", "s3"), RAW("s_cbranch_scc1 L_diag", "salu")]
        for k in range(8): T.append(V("v_mov_b32", f"v{k}", f"s{sSTAMP+2*k}"))
        for k in range(8): T.append(V("v_mov_b32", f"v{8+k}", f"s{sRT[k]}"))
        T += [S("s_lshl_b32", sT[0], "s2", 8), S("s_lshl_b32", sT[1], sWAVE, 6), S("s_add_u32", sT[0], sT[0], sT[1]), S("s_add_u32", sT[0], sT[0], 1 << 22),
              S("s_mov_b32", "s18", 1 << 23), V("v_mov_b32", "v16", 0), RAW("s_mov_b64 exec, 1", "salu")]
        for k in range(4): T.append(BST("buffer_store_dwordx4", R("v", 4 * k, 4), "v16", SG, sT[0], 16 * k))

    prog = list(P)
    for g in range(G0, NM):
        if g >= 0: prog.append(mf[g])
        gp = gaps[g]
        if c["ablr"][0] * 72 <= g < c["ablr"][1] * 72:
            drop = lambda i: (("v" in c["abl"] and i.kind in VALUK + ("dsw", "vst")) or ("r" in c["abl"] and i.kind == "dsr" and "a" in i.txt.split()[1])
                              or ("h" in c["abl"] and i.kind == "dsr" and "a" in i.txt.split()[1] and (g >> 1) & 1)
                              or ("d" in c["abl"] and i.kind == "dma") or ("x" in c["abl"] and i.kind == "dma" and i.tag[0] == "X")
                              or ("w" in c["abl"] and i.kind == "dma" and i.tag[0] == "W") or ("s" in c["abl"] and i.kind == "vst"))
            gp.mem = [i for i in gp.mem if not drop(i)]; gp.valu = [i for i in gp.valu if not drop(i)]
            if "n" in c["abl"] and g in barrier: barrier[g] = ([], [])
            if "b" in c["abl"] and g in barrier:
                prog.append(WAITPT(*barrier[g])); prog += gp.pre + gp.mem + gp.valu + gp.post
                continue
        if g in barrier:
            prog += [WAITPT(*barrier[g]), BAR()]
        elif g % 2 == 1 and g >= -1:
            prog.append(WAITPT(vm=waits.get(g, [])))
        prog += gp.pre + gp.mem + gp.valu + gp.post
    prog += T
    last = {}
    for it in prog:
        if id(it) in expect:
            for r, w in expect[id(it)].items(): assert last[r] is w, (it.txt, r, last[r].txt, w.txt)
        for r in it.wr: last[r] = it
    stats = {"fills": fills[:5] + fills[-1:]}
    prog = pad_hazards(insert_waits(prog, stats), stats)

    Z = []
    A = Z.append
    A(RAW("L_slow:", "label"))
    A(S("s_mov_b32", sT[4], c["spin"]))
    A(RAW("L_spin:", "label"))
    A(V("v_lshlrev_b32", vPOLL, 7, sH))
    A(BLD("buffer_load_dword", vPOLL, vPOLL, SD, 0, flags="sc1"))
    A(I("", "drain"))
    A(V("v_readfirstlane_b32", sT[0], vPOLL))
    A(S("s_sub_u32", sT[4], sT[4], 1))
    A(S("s_cmp_ge_u32", sT[0], 81)); A(RAW("s_cbranch_scc1 L_back", "salu"))
    A(S("s_cmp_lg_u32", sT[4], 0)); A(RAW("s_cbranch_scc1 L_spin", "salu"))
    A(S("s_and_b32", sT[4], sWAVE, 1)); A(S("s_mul_i32", sPN, sT[4], 9)); A(S("s_add_u32", sT[4], sPN, 9))
    A(V("v_lshrrev_b32", "v238", 4, vWLO)); A(V("v_and_b32", "v239", 15, "v238")); A(V("v_lshlrev_b32", "v239", 1, "v239"))
    A(V("v_lshrrev_b32", "v238", 4, "v238")); A(V("v_mul_u32_u24", "v238", 8 * ROW, "v238")); A(V("v_add_u32", "v238", "v238", "v239"))
    A(RAW("L_fn:", "label"))
    A(S("s_mov_b32", sPK, 0))
    A(RAW("L_fk:", "label"))
    Z += prod_addr()
    A(V("v_add_u32", "v255", sT[2], "v239"))
    A(GLD("global_load_ushort", "v253", "v255", "s[70:71]")); A(GLD("global_load_ushort", "v254", "v255", "s[72:73]"))
    for tap in range(3):
        for j in range(8):
            A(BLD("buffer_load_ushort", f"v{200+8*tap+j}", "v238", SW, sPSRC))
            A(S("s_add_u32", sPSRC, sPSRC, ROW if j < 7 else TAP - 7 * ROW))
    A(S("s_add_u32", sPSRC, sPDST, SLOT // 2))
    A(I("", "drain"))
    for i in list(range(200, 224)) + [253, 254]: A(V("v_lshlrev_b32", f"v{i}", 16, f"v{i}"))
    Z += scale_calc("v253", "v254", None)
    A(V("v_mul_f32", "v253", f2u(-LOG2E / 2), "v253"))
    for j in range(4):
        pr = lambda tap: (f"v{200+8*tap+2*j}", f"v{201+8*tap+2*j}")
        Z += prod_pair(pr(0), pr(1), pr(2), "v253", f"v{224+j}", f"v{228+j}", f"v{232+j}", ("v236", "v237"))
    Z += prod_store(SG, 224)
    A(I("", "drain"))
    A(S("s_add_u32", sPK, sPK, 1)); A(S("s_cmp_lt_u32", sPK, 18)); A(RAW("s_cbranch_scc1 L_fk", "salu"))
    A(S("s_add_u32", sPN, sPN, 1)); A(S("s_cmp_lt_u32", sPN, sT[4])); A(RAW("s_cbranch_scc1 L_fn", "salu"))
    A(RAW("s_branch L_back", "salu"))
    Z = pad_hazards(insert_waits(Z))

    head = open("standalone__batchnorm__sampling.s.ref").read().split("; Override")[0]
    o = [head + "; @launch grid=(256,1,1) block=(256,1,1) lds=163840", '.amdgcn_target "amdgcn-amd-amdhsa--gfx950"', ".text", f".globl {NAME}",
         ".p2align 8", f".type {NAME},@function", f"{NAME}:", "s_cmp_lt_u32 s2, 256", "s_cbranch_scc1 L_go", "s_endpgm", "L_go:"]
    o += [i.txt for i in prog]
    o += ["s_endpgm"] + [i.txt for i in Z] + ["L_codeend:", "s_endpgm"]
    o += ['.section .rodata,"a"', ".p2align 6", f".amdhsa_kernel {NAME}", "  .amdhsa_next_free_vgpr 512", "  .amdhsa_next_free_sgpr 102",
          "  .amdhsa_accum_offset 256", "  .amdhsa_group_segment_fixed_size 0", "  .amdhsa_kernarg_size 72", "  .amdhsa_user_sgpr_count 2",
          "  .amdhsa_user_sgpr_kernarg_segment_ptr 1", "  .amdhsa_system_sgpr_workgroup_id_x 1", ".end_amdhsa_kernel", ""]
    return "\n".join(o), stats

if __name__ == "__main__":
    out = sys.argv[1]
    kw = {}
    for a in sys.argv[2:]:
        k, v = a.split("=", 1)
        kw[k] = eval(v)
    txt, stats = gen(**kw)
    open(out, "w").write(txt)
    nl = stats.pop("noplist", [])
    print(out, len(txt), "bytes", txt.count("\n"), "lines", stats)
    for x in nl:
        if x[0] > 450: print("  nop", x)
```

```python
import sys, struct
from asmlib import *

def f2u(x):
    return "0x%08x" % struct.unpack("<I", struct.pack("<f", x))[0]

NAME = "standalone__batchnorm__sampling_kernel"
LOG2E = 1.4426950408889634
ROW = 1152
BATCH = 36864
TAP = 663552
SLOT = 36864
GHALF = 27 * SLOT
XLDS = 3 * SLOT
STG = XLDS + 4 * 12288
NSTEP = 36

SX, SW, SG, SGS, SO, SD = "s[8:11]", "s[12:15]", "s[16:19]", "s[20:23]", "s[24:27]", "s[28:31]"
sWAVE, sH, sRB, sLW, sWB, sGB, sXL = "s40", "s41", "s42", "s43", "s46", "s47", "s48"
sXB = [["s44", "s45"], ["s63", "s83"]]
sSTG = "s82"
sOB = ["s49", "s50"]
sSP1, sGA, sGBb, sGC = "s51", "s52", "s53", "s54"
sMASK = "s55"
sC2, sC = "s[56:57]", "s56"
sPN, sPK, sPSRC, sPDST, sPDST2 = "s58", "s59", "s60", "s61", "s62"
sT = ["s3", "s4", "s5", "s6", "s7"]
sSTAMP = 84
sRT = [100, 32, 34, 36, 38, 64, 66, 68]
vWLO, vWHI, vXDMA, vST, vS0, vS1, vSR, vTAB = "v32", "v33", "v36", "v37", "v38", "v39", "v40", "v41"
vXR = ["v34", "v35"]
TMP = 42
vPOLL = "v252"
QB, PB = 48, 192
vW1, vTR, vTF, vAOFF, vONE = "v192", 193, "v197", "v198", "v199"

def Qt(j): return R("v", QB + 4 * j, 4)
def Pt(j): return R("v", PB + 4 * j, 4) if j < 16 else R("a", 144 + 4 * (j - 16), 4)
def Rt(j): return R("a", 4 * j, 4)
def Wf(F): return 224 + 4 * (F % 8)
def phase(s): return 1 if s < 9 else (2 if s < 27 else 3)

DEF = dict(LA=6, stamps=False, nosignal=False, spin=4000, pos=(1, 3, 6, 8, 11, 13, 16, 18, 21, 24, 27, 30, 33), swap=True, prodr=(12, 110),
           gflags="sc1", stflags="sc1", rt=False, diag=None, abl="", ablr=(0, 0), pf_w=False, pf_code=True, pollwin=5, sigwin=3, xflags="", at=(), pf2="b", pfd=0, visit=(), vlate=0, pf1=0, align=True, kofs=0x300)

class Gap:
    def __init__(self):
        self.pre, self.mem, self.valu, self.post = [], [], [], []
    def used(self):
        return sum(i.cost for i in self.mem + self.valu)

def scale_calc(var, g, t):
    def rnd(r): return [V("v_cvt_pk_bf16_f32", r, r, r), V("v_and_b32", r, sMASK, r)]
    L = [V("v_add_f32", var, f2u(1e-5), var)] + rnd(var)
    L += [V("v_sqrt_f32", var, var)] + rnd(var)
    L += [V("v_rcp_f32", var, var)] + rnd(var)
    L += [V("v_mul_f32", var, g, var)] + rnd(var)
    return L

def prod_pair(a, b, c, sh, o1, o2, o3, t):
    L = []
    for e in range(2):
        L.append(V("v_add_f32", a[e], a[e], c[e]))
    for e in range(2):
        L.append(V("v_mul_f32", a[e], a[e], sh))
    for e in range(2):
        L.append(V("v_mul_f32", c[e], c[e], sh))
    for e in range(2):
        L.append(V("v_fma_f32", t[e], b[e], sh, a[e]))
    for e in range(2):
        L.append(V("v_fma_f32", a[e], "-" + b[e], sh, a[e]))
    for e in range(2):
        L.append(V("v_add_f32", c[e], c[e], c[e]))
    L.append(V("v_cvt_pk_bf16_f32", o1, t[0], t[1]))
    L.append(V("v_cvt_pk_bf16_f32", o2, a[0], a[1]))
    L.append(V("v_cvt_pk_bf16_f32", o3, c[0], c[1]))
    return L

def prod_addr():
    L = [S("s_mul_i32", sPSRC, sPK, 32 * ROW), S("s_lshl_b32", sT[0], sPN, 5), S("s_add_u32", sPSRC, sPSRC, sT[0]),
         S("s_mul_i32", sT[1], sH, 576), S("s_add_u32", sPSRC, sPSRC, sT[1]), S("s_add_u32", sT[2], sT[0], sT[1]),
         S("s_mul_i32", sT[1], sH, GHALF), S("s_lshl_b32", sT[0], sPN, 10), S("s_add_u32", sT[1], sT[1], sT[0]),
         S("s_mul_i32", sPDST, sPK, SLOT), S("s_add_u32", sPDST, sPDST, sT[1]),
         S("s_mul_i32", sPDST2, sPK, SLOT // 2), S("s_add_u32", sPDST2, sPDST2, sT[1]), S("s_add_u32", sPDST2, sPDST2, 18 * SLOT)]
    return L

def prod_store(srd, o, tag=None):
    return [BST("buffer_store_dwordx4", R("v", o, 4), vWLO, srd, sPDST, flags="sc1"),
            BST("buffer_store_dwordx4", R("v", o + 4, 4), vWLO, srd, sPSRC, flags="sc1"),
            BST("buffer_store_dwordx4", R("v", o + 8, 4), vWLO, srd, sPDST2, flags="sc1", tag=tag)]

def gen(**kw):
    c = dict(DEF); c.update(kw)
    LA = c["LA"]
    nstamp = [0]
    def stamp(custom=False):
        if not c["stamps"] or (bool(c["at"]) != custom and nstamp[0] > 0): return []
        k = nstamp[0]; nstamp[0] += 1
        assert k < 8
        return [RAW(f"s_memtime s[{sSTAMP+2*k}:{sSTAMP+2*k+1}]", "salu"), RAW(f"s_memrealtime s[{sRT[k]}:{sRT[k]+1}]", "salu")]

    g0 = lambda s: 72 * s - 2 * LA - 1
    ev = lambda s, e: g0(s) + 1 + 2 * e
    def w_dmas(s):
        slot = (s % 3) * SLOT
        out = []
        if phase(s) == 1:
            for m in range(9):
                early = [S("s_add_u32", sSP1, sWB, 64 * s * ROW)] if m == 0 else []
                out.append([early, (sLW, slot + 960 * m), DMA(vW1, SW, sSP1, 64 * m, tag=f"W{s}")])
        else:
            sr = [sGA, sGBb, sGC]
            for i in range(9):
                early = [S("s_add_u32", sr[i // 4], sGB, (s - 9) * SLOT + 1024 * i)] if i % 4 == 0 else []
                out.append([early, (sLW, slot + 4096 * (i // 4)), DMA(vWLO, SG, sr[i // 4], 1024 * (i % 4), tag=f"W{s}", flags=c["gflags"])])
        return out
    def m0set(spec):
        return S("s_add_u32", "m0", spec[0], spec[1]) if spec[1] >= 0 else S("s_sub_u32", "m0", spec[0], -spec[1])

    quads = {}
    for s in range(NSTEP):
        if s < 9: quads[s] = [0, 4, 8, 12]
        elif s == 9 or s >= 27: quads[s] = [16, 20, 24, 28]
        else:
            q = quads[s - 2]
            quads[s] = [q[0], q[2], q[1], q[3]]

    class Gran:
        def __init__(self, name, b, par, ch, reads):
            self.name, self.b, self.par, self.ch, self.reads, self.slot = name, b, par, ch, reads, None
        def dmas(self):
            imm = self.par * ROW + 128 * self.ch
            return [[[], (self, 1024 * i - imm), DMA(vXDMA, SX, sXB[self.b][i], imm, tag="X" + self.name, flags=c["xflags"])] for i in range(2)]
        def read(self, k):
            _, q, kk = self.reads[k]
            return DSR("ds_read_b128", R("v", q, 4), vXR[kk], 2048 * self.slot)
    gr = {}
    for s in range(NSTEP):
        F0, F1, S0, S1 = quads[s]
        if phase(s) != 2:
            par, ch = (1, s) if s < 9 else (0, s - 27)
            gr[f"A{s}"] = Gran(f"A{s}", 0, par, ch, [(ev(s, 0), F0, 0), (ev(s, LA + 3), S0, 1)])
            gr[f"B{s}"] = Gran(f"B{s}", 1, par, ch, [(ev(s, 2), F1, 0), (ev(s, LA + 4), S1, 1)])
        elif s % 2 == 1:
            ch = (s - 9) // 2
            N0, N1, T0, T1 = quads[s + 1]
            e0, e1 = (4, 5) if s == 9 else (0, 2)
            gr[f"AE{ch}"] = Gran(f"AE{ch}", 0, 0, ch, [(ev(s - 1, e0), F0, 0), (ev(s, 0), N0, 1)])
            gr[f"AO{ch}"] = Gran(f"AO{ch}", 0, 1, ch, [(ev(s - 1, e1), S0, 0), (ev(s, 2), T0, 1)])
            gr[f"BE{ch}"] = Gran(f"BE{ch}", 1, 0, ch, [(ev(s - 1, 17), F1, 0), (ev(s, 17), N1, 1)])
            gr[f"BO{ch}"] = Gran(f"BO{ch}", 1, 1, ch, [(ev(s - 1, 19), S1, 0), (ev(s, 19), T1, 1)])
    gr["PR"] = Gran("PR", 0, 0, 0, [(c["prodr"][0], 0, 0)])
    X = lambda *names: [d for n in names if n in gr for d in gr[n].dmas()]
    busy = [-10**6] * 6
    def alloc(g, when):
        if g.slot is None:
            free = [i for i in range(6) if busy[i] <= when]
            assert free, ("no x slot", g.name, when, busy)
            g.slot = free[0]
            busy[g.slot] = max(r[0] for r in g.reads) + 14
    def resolve(item, when):
        if isinstance(item[1][0], Gran):
            alloc(item[1][0], when)
            item[1] = (sXL, 2048 * item[1][0].slot + item[1][1])
    expect = {}
    def flat(dl):
        L = []
        for it in dl:
            resolve(it, -1000)
            L += it[0] + [m0set(it[1]), it[2]]
        return L
    def w_reads(F):
        s, f = divmod(F, 36)
        slot = (s % 3) * SLOT
        if phase(s) == 1:
            kk, n = divmod(f, 18)
            m, u = n >> 1, n & 1
            hi = 1 if s % 3 == 2 else 0
            off = (0 if hi else slot) + kk * 18432 + m * 1024
            return [DSR("ds_read_b64_tr_b16", R("a", Wf(F) + 2 * hf, 2), f"v{vTR + 2 * hi + u}", off + 256 * hf) for hf in range(2)]
        off = slot + 1024 * f
        return [DSR("ds_read_b128", R("a", Wf(F), 4), vWLO if off < 65536 else vWHI, off & 65535)]

    vret = {}
    def visit(r, pages):
        L = [RAW("s_mov_b64 vcc, 1", "salu")]
        for w, p in enumerate(pages):
            vret[p] = f"L_vr{r}"
            if w < 3: L += [S("s_cmp_eq_u32", sWAVE, w), RAW(f"s_cbranch_scc1 L_pg{p}", "salu")]
            else: L.append(RAW(f"s_branch L_pg{p}", "salu"))
        return L + [RAW(f"L_vr{r}:", "label"), RAW("s_mov_b64 vcc, 0", "salu")]
    def vround(pt):
        L = []
        for r, x in enumerate(c["visit"]):
            if x == pt: L += visit(r, [p for p in range(4 * r + 1, 4 * r + 5) if p <= 15])
        return L

    P = []
    A = P.append
    P += stamp()
    A(RAW("s_load_dwordx4 s[64:67], s[0:1], 0", "salu"))
    if c["pf_code"]:
        A(RAW("s_getpc_b64 s[4:5]", "salu", wr=["s4", "s5"]))
        A(RAW("L_pc:", "label"))
        A(S("s_lshr_b32", "s3", "s2", 3)); A(S("s_mul_i32", "s3", "s3", 20 * 128))
        A(V("v_min_u32", "v14", 19, "v0")); A(V("v_lshl_add_u32", "v14", "v14", 7, "s3"))
        A(V("v_min_u32", "v14", "L_codeend-L_pc-4", "v14"))
        A(GLD("global_load_dword", "v254", "v14", "s[4:5]"))
        if c["pf1"]:
            A(S("s_and_b32", "s4", "s4", "0xfffff000"))
            A(V("v_and_b32", "v14", 63, "v0")); A(V("v_min_u32", "v14", 15, "v14")); A(V("v_lshlrev_b32", "v14", 12, "v14"))
            A(V("v_lshrrev_b32", "v15", 6, "v0")); A(V("v_min_u32", "v15", c["pf1"] - 1, "v15")); A(V("v_lshl_add_u32", "v14", "v15", 7, "v14"))
            A(V("v_add_u32", "v14", 4096, "v14"))
            A(GLD("global_load_dword", "v253", "v14", "s[4:5]"))
    A(RAW("s_load_dwordx8 s[68:75], s[0:1], 16", "salu"))
    A(RAW("s_load_dwordx4 s[76:79], s[0:1], 48", "salu"))
    A(RAW("s_load_dwordx2 s[80:81], s[0:1], 64", "salu"))
    A(V("v_lshrrev_b32", "v1", 6, "v0"))
    A(V("v_and_b32", "v2", 63, "v0"))
    A(V("v_readfirstlane_b32", sWAVE, "v1"))
    A(S("s_bfe_u32", sH, "s2", "0x10003"))
    A(S("s_lshr_b32", sRB, "s2", 4)); A(S("s_and_b32", sT[0], "s2", 7)); A(S("s_lshl3_add_u32", sRB, sRB, sT[0]))
    A(V("v_lshrrev_b32", "v3", 2, "v2"))
    A(V("v_and_b32", "v4", 3, "v2"))
    A(V("v_lshrrev_b32", "v5", 4, "v2"))
    A(V("v_and_b32", "v6", 15, "v2"))
    A(S("s_lshl2_add_u32", sT[3], sRB, sWAVE))
    A(S("s_mul_i32", sT[4], sT[3], 2 * BATCH))
    A(S("s_mul_i32", sT[1], sH, BATCH if c["swap"] else 0))
    A(S("s_add_u32", sXB[0][0], sT[4], sT[1])); A(S("s_sub_u32", sXB[1][0], BATCH, sT[1])); A(S("s_add_u32", sXB[1][0], sXB[1][0], sT[4]))
    A(S("s_add_u32", sXB[0][1], sXB[0][0], 16 * ROW)); A(S("s_add_u32", sXB[1][1], sXB[1][0], 16 * ROW))
    A(S("s_mul_i32", sXL, sWAVE, 12288)); A(S("s_add_u32", sXL, sXL, XLDS))
    A(S("s_mul_i32", sLW, sWAVE, 9216))
    A(S("s_mul_i32", sT[0], sH, 576))
    A(S("s_mul_i32", sWB, sWAVE, 16 * ROW)); A(S("s_add_u32", sWB, sWB, sT[0]))
    A(S("s_add_u32", sOB[0], sXB[0][0], sT[0])); A(S("s_add_u32", sOB[1], sXB[1][0], sT[0]))
    A(V("v_lshrrev_b32", "v7", 3, "v2")); A(V("v_mul_u32_u24", vXDMA, 2 * ROW, "v7"))
    A(V("v_and_b32", "v7", 7, "v2")); A(V("v_lshlrev_b32", "v8", 1, "v5")); A(V("v_xor_b32", "v7", "v7", "v8")); A(V("v_lshl_add_u32", vXDMA, "v7", 4, vXDMA))
    A(V("v_and_b32", "v7", 2, "v5")); A(V("v_xor_b32", "v7", "v4", "v7"))
    A(V("v_mul_u32_u24", vW1, ROW, "v3")); A(V("v_lshl_add_u32", vW1, "v7", 4, vW1))
    A(S("s_min_u32", sT[4], sT[3], 323))
    A(S("s_mul_i32", sPK, sT[4], 3641)); A(S("s_lshr_b32", sPK, sPK, 16))
    A(S("s_mul_i32", sPN, sPK, 18)); A(S("s_sub_u32", sPN, sT[4], sPN))
    P += prod_addr()
    A(V("v_lshl_add_u32", "v8", "v6", 1, sT[2]))
    A(V("v_lshrrev_b32", "v9", 1, "v2")); A(V("v_mul_u32_u24", "v9", ROW, "v9"))
    A(V("v_and_b32", "v10", 1, "v2")); A(V("v_lshl_add_u32", "v9", "v10", 4, "v9"))
    A(S("s_lshl_b32", sSTG, sWAVE, 10)); A(S("s_add_u32", sSTG, sSTG, STG))
    def srd(base, lo, nrec):
        return [S("s_mov_b32", f"s{base}", f"s{lo}"), S("s_mov_b32", f"s{base+1}", f"s{lo+1}"),
                S("s_mov_b32", f"s{base+2}", nrec), S("s_mov_b32", f"s{base+3}", "0x20000")]
    def pfw(dst, row0, nl):
        return [S("s_lshr_b32", sT[0], "s2", 3), S("s_lshl2_add_u32", sT[0], sT[0], sWAVE), S("s_mul_i32", sT[0], sT[0], nl * 128), S("s_add_u32", sT[0], sT[0], row0 * ROW),
                V("v_lshlrev_b32", dst, 3, vWLO), V("v_min_u32", dst, (nl - 1) * 128, dst), BLD("buffer_load_dword", dst, dst, SW, sT[0])]
    A(V("v_lshlrev_b32", vWLO, 4, "v2"))
    A(RAW("s_waitcnt lgkmcnt(0)", "wait"))
    P += srd(8, 64, 1024 * BATCH) + srd(12, 66, 3 * TAP)
    if c["pf_w"]: P += pfw("v255", 64, 9)
    P += flat(X("A0", "B0")) + flat(w_dmas(0))
    P += [S("s_mov_b32", r, 0) for r in (sGA, sGBb, sGC)] if c["visit"] else []
    PA = P; P = []; A = P.append
    A(GLD("global_load_ushort", "v238", "v8", "s[70:71]")); A(GLD("global_load_ushort", "v239", "v8", "s[72:73]"))
    alloc(gr["PR"], -1000)
    for tap in range(3):
        A(m0set((sXL, 2048 * gr["PR"].slot + 1024 * tap) if tap < 2 else (sSTG, 0)))
        if tap: A(S("s_add_u32", sPSRC, sPSRC, TAP))
        A(DMA("v9", SW, sPSRC, tag="XPR"))
    A(S("s_add_u32", sPSRC, sPDST, SLOT // 2))
    w1 = w_dmas(1)
    late = vround(1) + flat(X("A1", "B1")) + vround(2) + flat(w1[:4]) + vround(3) + flat(w1[4:]) + vround(4)
    K = []
    A = K.append
    A(S("s_mov_b32", sMASK, "0xffff0000"))
    A(S("s_mov_b32", "s56", f2u(-LOG2E))); A(S("s_mov_b32", "s57", f2u(-LOG2E)))
    A(S("s_mul_i32", sGB, sH, GHALF)); A(S("s_add_u32", sGB, sGB, sLW))
    K += srd(16, 80, 2 * GHALF) + srd(20, 80, 2 * GHALF) + srd(24, 76, 1024 * BATCH) + srd(28, 78, 256)
    A(S("s_cmp_lt_u32", sT[3], 324)); A(S("s_cselect_b32", "s22", "s22", 0))
    A(V("v_add_u32", vWHI, 65536, vWLO))
    if c["pf2"]:
        A(RAW("s_getpc_b64 s[0:1]", "salu", wr=["s0", "s1"]))
        A(S("s_and_b32", "s0", "s0", "0xfffff000"))
        A(S("s_lshr_b32", sT[0], "s2", 3)); A(S("s_and_b32", sT[1], sWAVE, 1)); A(S("s_lshl1_add_u32", sT[0], sT[0], sT[1]))
        A(S("s_lshl_b32", sT[0], sT[0], 6)); A(S("s_add_u32", "s78", "s0", sT[0])); A(S("s_mov_b32", "s79", "s1"))
    A(V("v_and_b32", "v7", 6, "v6")); A(V("v_xor_b32", "v7", "v5", "v7")); A(V("v_lshlrev_b32", "v7", 4, "v7"))
    A(V("v_lshl_add_u32", "v7", "v6", 7, "v7")); A(V("v_add_u32", vXR[0], sXL, "v7")); A(V("v_xor_b32", vXR[1], 64, vXR[0]))
    A(V("v_sub_u32", "v7", 0, "v5")); A(V("v_and_b32", "v7", 3, "v7")); A(V("v_xor_b32", "v7", "v4", "v7"))
    A(V("v_mul_u32_u24", vST, 2 * ROW, "v3")); A(V("v_lshl_add_u32", vST, "v7", 4, vST))
    A(V("v_lshrrev_b32", "v7", 2, "v6")); A(V("v_sub_u32", "v7", 0, "v7")); A(V("v_and_b32", "v7", 3, "v7"))
    A(V("v_lshrrev_b32", "v20", 1, "v5")); A(V("v_and_b32", "v21", 1, "v5"))
    A(V("v_xor_b32", "v10", "v20", "v7")); A(V("v_lshlrev_b32", "v10", 4, "v10")); A(V("v_lshl_add_u32", "v10", "v21", 3, "v10"))
    A(V("v_lshl_add_u32", vS0, "v6", 6, "v10")); A(V("v_add_u32", vS0, sSTG, vS0)); A(V("v_xor_b32", vS1, 32, vS0))
    A(V("v_add_u32", vSR, sSTG, vWLO))
    A(V("v_lshlrev_b32", vTAB, 4, "v5")); A(V("v_add_u32", vTAB, STG, vTAB))
    A(V("v_and_b32", "v22", 3, "v3"))
    A(V("v_lshl_add_u32", "v23", "v21", 3, "v22")); A(V("v_lshlrev_b32", "v23", 6, "v23"))
    A(V("v_mul_u32_u24", "v24", 9216, "v20")); A(V("v_add_u32", "v23", "v23", "v24"))
    A(V("v_lshrrev_b32", "v24", 1, "v4")); A(V("v_lshl_add_u32", "v24", "v21", 1, "v24")); A(V("v_lshl_add_u32", "v23", "v24", 4, "v23"))
    A(V("v_and_b32", "v24", 1, "v4")); A(V("v_lshl_add_u32", f"v{vTR}", "v24", 3, "v23"))
    A(V("v_xor_b32", f"v{vTR+1}", 32, f"v{vTR}"))
    A(V("v_add_u32", f"v{vTR+2}", 2 * SLOT, f"v{vTR}")); A(V("v_add_u32", f"v{vTR+3}", 2 * SLOT, f"v{vTR+1}"))
    A(V("v_subrev_u32", "v24", 16, "v6")); A(V("v_cvt_f32_i32", vTF, "v24")); A(V("v_add_f32", vTF, vTF, vTF))
    A(S("s_lshl_b32", sT[0], sH, 7)); A(V("v_mov_b32", vPOLL, sT[0])); A(S("s_cmp_lt_u32", sRB, 81)); A(S("s_cselect_b32", sT[0], sT[0], 4096))
    A(V("v_lshl_add_u32", vAOFF, "v0", 8, sT[0])); A(V("v_mov_b32", vONE, 1))
    A(V("v_lshl_add_u32", "v24", "v5", 3, "v22")); A(V("v_lshlrev_b32", "v24", 5, "v24")); A(V("v_lshl_add_u32", "v24", "v4", 3, "v24"))
    A(V("v_add_u32", "v25", sSTG, "v24")); A(V("v_add_u32", "v24", sXL, "v24"))
    A(S("s_mul_i32", sT[0], sH, 576))
    A(V("v_lshl_add_u32", "v26", "v0", 2, sT[0])); A(V("v_min_u32", "v26", 1148, "v26"))
    A(V("v_lshlrev_b32", "v27", 3, "v0")); A(V("v_add_u32", "v27", STG, "v27"))
    P = (PA + K + vround(0) + P if 0 in c["visit"] else PA + P + K) + late
    P += [WAITTAG(vm=["W0", "XA0", "XB0"]), BAR()]
    P += stamp()

    PROD = []
    A = PROD.append
    for tap in range(3):
        for hf in range(2):
            A(DSR("ds_read_b64_tr_b16", R("v", 200 + 4 * tap + 2 * hf, 2), "v24" if tap < 2 else "v25", (2048 * gr["PR"].slot + 1024 * tap if tap < 2 else 0) + 128 * hf))
    A(V("v_lshlrev_b32", "v238", 16, "v238")); A(V("v_lshlrev_b32", "v239", 16, "v239"))
    PROD += scale_calc("v238", "v239", None)
    A(V("v_mul_f32", "v238", f2u(-LOG2E / 2), "v238"))
    for j in range(4):
        for tap in range(3):
            A(V("v_lshlrev_b32", f"v{224+2*tap}", 16, f"v{200+4*tap+j}")); A(V("v_and_b32", f"v{225+2*tap}", sMASK, f"v{200+4*tap+j}"))
        PROD += prod_pair(("v224", "v225"), ("v226", "v227"), ("v228", "v229"), "v238", f"v{212+j}", f"v{216+j}", f"v{220+j}", ("v230", "v231"))
    PROD += prod_store(SGS, 212, tag="PST")
    TABL = [GLD("global_load_dword", f"v{16+i}", "v26", f"s[{68+2*i}:{69+2*i}]", tag="TL") for i in range(4)]
    TABC = []
    A = TABC.append
    for e in range(2):
        for i in range(4):
            A(V("v_lshlrev_b32", f"v{232+2*i}", 16, f"v{16+i}") if e == 0 else V("v_and_b32", f"v{233+2*i}", sMASK, f"v{16+i}"))
    for e in range(2):
        mean, var, g, b = (f"v{232+2*i+e}" for i in range(4))
        TABC += scale_calc(var, g, None)
        A(V("v_fma_f32", b, "-" + mean, var, b))
        A(V("v_mul_f32", var, f2u(-LOG2E / 2), var)); A(V("v_mul_f32", b, f2u(-LOG2E / 2), b))
    A(DSW("ds_write_b64", "v27", "v[234:235]")); A(DSW("ds_write_b64", "v27", "v[238:239]", 2048, tag="TAB"))

    NM = 72 * NSTEP
    G0 = -(2 * LA + 1)
    gaps = {g: Gap() for g in range(G0, NM)}
    mf = []
    for s in range(NSTEP):
        F0, F1, S0, S1 = quads[s]
        for f in range(36):
            half, n = divmod(f, 18)
            for z in range(2):
                b = z ^ (f & 1)
                j = 2 * n + b
                xb = R("v", ((F0, F1), (S0, S1))[half][b], 4)
                wa = R("a", Wf(36 * s + f), 4)
                ph = phase(s)
                if ph == 1: d = Qt(j); cc = 0 if (s == 0 and half == 0) else d
                elif ph == 2:
                    d = Pt(j) if half == 0 else Qt(j)
                    cc = Qt(j) if (s == 9 and half == 0 and j < 16) else d
                else: d = cc = Rt(j)
                mf.append(MFMA(d, wa, xb, cc))
    for F in range(36 * NSTEP):
        for k, r in enumerate(w_reads(F)):
            gaps[2 * (F - LA) - 1 + k].mem.append(r)
    earlies = []
    isvm = lambda g: any(m.kind in ("dma", "vld", "vst") for m in gaps[g].mem)
    cur = [None]
    sof = {}
    def place(dl, s, pos):
        assert len(pos) >= len(dl), (s, len(dl))
        for it, e in zip(dl, pos):
            g = ev(s, e)
            resolve(it, g)
            assert not isvm(g)
            gaps[g].mem.insert(0, it[2])
            if cur[0] is None or cur[0][0] != it[1]:
                cur[0] = (it[1], m0set(it[1]))
                gaps[g - 1 if any(m.kind == "dma" for m in gaps[g - 2].mem) else g - 2].pre.append(cur[0][1])
            expect[id(it[2])] = {"m0": cur[0][1]}
            for x in it[0]:
                for r in x.wr: sof[r] = x
            for r in it[2].rd & set(sof): expect[id(it[2])][r] = sof[r]
            earlies.append((g, it[0]))
    barrier, waits = {}, {}
    pos = c["pos"]
    pos15 = (1, 3, 5, 8, 10, 12, 15, 17, 19, 22, 24, 27, 29, 32, 34)
    for s in range(NSTEP):
        W = w_dmas(s + 2) if s + 2 < NSTEP else []
        if s > 0: barrier[g0(s)] = ([f"W{s}"], [])
        if s == 0: place(X("A2") + W + X("B2", "A3"), s, tuple(range(7, 36, 2)))
        elif s == 5: place(W + X("B7", "A8", "AE0"), s, pos15)
        elif s == 6: place(W + X("B8", "AO0"), s, pos)
        elif s == 7: place(W[:8] + X("BE0", "BO0") + W[8:], s, pos)
        elif s == 8: place(W + X("AE1", "AO1"), s, pos)
        elif 9 <= s <= 23 and s % 2 == 1: place(W[:4] + X(f"BE{(s-7)//2}", f"BO{(s-7)//2}") + W[4:], s, pos)
        elif 9 <= s <= 23: place(X(f"AE{(s-6)//2}", f"AO{(s-6)//2}") + W, s, pos)
        else: place(W + X(f"B{s+2}", f"A{s+3}"), s, pos)
        if s == 0 and c["pf_w"]:
            pf = pfw("v253", 192, 27)
            for k, it in enumerate(pf[:4]): gaps[1 + 2 * k].pre.append(it)
            gaps[9].valu.append(pf[4]); gaps[11].valu.append(pf[5]); gaps[ev(0, 12)].mem.insert(0, pf[6])
        if s == 0:
            for it, e in zip(TABL, (18, 20, 22, 24)): gaps[ev(s, e)].mem.insert(0, it)
        if s == 3: barrier[g0(s)][1].append("TAB")
        if s == c["sigwin"]:
            barrier[g0(s)][0].append("PST")
            if not c["nosignal"]:
                gaps[ev(s, 4)].mem.insert(0, I(f"buffer_atomic_add {vONE}, {vAOFF}, {SD}, 0 offen sc1", "vst", regs(vONE) + regs(vAOFF) + regs(SD), cost=8))
        if s == c["pollwin"]:
            gaps[ev(s, 25)].mem.insert(0, BLD("buffer_load_dword", vPOLL, vPOLL, SD, 0, flags="sc1", tag="POLL"))
        if s == 7:
            barrier[g0(s)][0].append("POLL")
            gaps[g0(s)].valu.append(V("v_readfirstlane_b32", sT[0], vPOLL))
            gaps[g0(s) + 1].pre += [S("s_cmp_lt_u32", sT[0], 81), RAW("s_cbranch_scc1 L_slow", "salu"), RAW("L_back:", "label")]
    for gn in gr.values():
        assert gn.slot is not None, gn.name
        g = gn.reads[0][0] - 1
        near = [x for x in barrier if 0 <= g - x <= 12]
        if near: barrier[near[0]][0].append("X" + gn.name)
        elif g >= 0: waits.setdefault(g, []).append("X" + gn.name)
        if gn.name != "PR":
            gn.rd = [gn.read(k) for k in range(2)]
            for k in range(2): gaps[gn.reads[k][0]].mem.append(gn.rd[k])
    for s in range(NSTEP):
        if phase(s) != 2:
            for i in range(72):
                half, b = i // 36, (i & 1) ^ ((i >> 1) & 1)
                w = gr["AB"[b] + str(s)].rd[half]
                expect[id(mf[72 * s + i])] = {r: w for r in w.wr}
                assert w.wr <= mf[72 * s + i].rd

    for g, early in earlies:
        for it in early:
            k = g - 2
            while k > g - 14 and (gaps[k].pre or isvm(k)): k -= 2
            if k <= g - 14: k = g - 2
            gaps[k].pre.insert(0, it)

    def fill(stream, lo, hi):
        cap = {g: max(0, 8 - gaps[g].used()) for g in range(lo, hi)}
        demand = sum(i.cost for i in stream)
        extra = max(0.0, (demand - sum(cap.values())) / (hi - lo))
        k, credit = 0, 0.0
        for g in range(lo, hi):
            credit += cap[g] + extra
            first = not gaps[g].valu
            fresh = True
            while k < len(stream):
                it = stream[k]
                assert it.kind != "salu"
                need = it.cost - 3.99 if extra > 0 else (min(it.cost, 4) if fresh else it.cost)
                if credit < need and g != hi - 1: break
                if it.kind in ("dsr", "dsw", "vst"):
                    if not first and g != hi - 1: break
                    (gaps[g].mem if first else gaps[g].valu).append(it)
                else:
                    gaps[g].valu.append(it); first = False
                credit -= it.cost; k += 1; fresh = False
            if extra == 0: credit = min(credit, 0.0)
        assert k == len(stream)
        fills.append((lo, hi, demand, sum(cap.values())))

    fills = []
    fill(PROD, c["prodr"][0], c["prodr"][1])
    fill(TABC, g0(2) + 2, g0(3) - 8)
    L = []
    rd = lambda n: DSR("ds_read_b128", R("v", 240 + 4 * (n % 2), 4), vTAB, 2048 + 64 * n)
    L.append(rd(0))
    for n in range(18):
        if n + 1 < 18: L.append(rd(n + 1))
        for r in range(4): L.append(V("v_mul_f32", f"v{248+r}", vTF, f"v{240+4*(n%2)+r}"))
        for b in range(2):
            for r in range(4): L.append(V("v_accvgpr_write_b32", f"a{4*(2*n+b)+r}", f"v{248+r}"))
    fill(L, g0(3) + 2, 72 * 8 - 10)

    for s in range(9, 27):
        F0, F1, S0, S1 = quads[s]
        L = []
        t = [f"v{TMP+i}" for i in range(6)]
        for b, (E, O) in enumerate(((F0, S0), (F1, S1))):
            for j in range(4):
                e, o = f"v{E+j}", f"v{O+j}"
                n0 = len(L)
                L += [V("v_lshlrev_b32", t[0], 16, e), V("v_and_b32", t[1], sMASK, e), V("v_lshlrev_b32", t[2], 16, o), V("v_and_b32", t[3], sMASK, o),
                      V("v_add_f32", t[4], t[0], t[2]), V("v_add_f32", t[5], t[1], t[3]), V("v_sub_f32", t[2], t[2], t[0]), V("v_sub_f32", t[3], t[3], t[1]),
                      V("v_cvt_pk_bf16_f32", e, t[4], t[5]), V("v_cvt_pk_bf16_f32", o, t[2], t[3])]
                nm = lambda p: gr["AB"[b] + p + str((s - 9) // 2)].rd[(s - 9) % 2]
                expect[id(L[n0])] = {e: nm("E")}; expect[id(L[n0 + 2])] = {o: nm("O")}
                for i in range(72):
                    if (i & 1) ^ ((i >> 1) & 1) == b:
                        expect.setdefault(id(mf[72 * s + i]), {})[e if i < 36 else o] = L[n0 + 8 + i // 36]
        fill(L, 72 * (s - 1) + (6 if s == 9 else 0), 72 * s)

    L = [I("", "fence")] + stamp()
    if c["vlate"]: L += visit(9, range(16, 16 + c["vlate"]))
    prd = lambda n: [DSR("ds_read_b128", R("v", PB + 8 * (n % 6), 4), vTAB, 64 * n), DSR("ds_read_b128", R("v", PB + 8 * (n % 6) + 4, 4), vTAB, 2048 + 64 * n)]
    for n in range(3): L += prd(n)
    dppm = "row_shr:1 row_mask:0xf bank_mask:0xf bound_ctrl:1"
    def bdpp(n):
        return [V("v_sub_f32_dpp", f"v{QB+8*n+r}", f"v{QB+8*n+r}", f"v{QB+8*n+r}", mod=dppm) for r in range(8)]
    L += bdpp(0)
    for n in range(18):
        if n + 3 < 18: L += prd(n + 3)
        if n + 1 < 18: L += bdpp(n + 1)
        pb = PB + 8 * (n % 6)
        for b in range(2):
            for r in (0, 2):
                q = R("v", QB + 8 * n + 4 * b + r, 2)
                L.append(V("v_pk_fma_f32", q, q, R("v", pb + r, 2), R("v", pb + 4 + r, 2)))
        if n >= 8:
            for r in range(8): L.append(V("v_accvgpr_write_b32", f"a{144+8*(n-8)+r}", f"v{QB+8*n+r}"))
    L += stamp()
    gaps[72 * 9 - 1].post = L
    gaps[72 * 27 - 1].post = stamp()

    for g in c["at"]: gaps[g].post = stamp(True) + gaps[g].post

    def stage(pk, dst, b, m, par):
        return ([DSW("ds_write_b64", vS0, R("v", pk, 2)), DSW("ds_write_b64", vS1, R("v", pk + 2, 2)), DSR("ds_read_b128", R("v", dst, 4), vSR)],
                [BST("buffer_store_dwordx4", R("v", dst, 4), vST, SO, sOB[b], par * ROW + 64 * m, flags=c["stflags"])])
    L = []
    pend = []
    gi = 0
    for m in range(9):
        for b in range(2):
            js = (2 * (2 * m) + b, 2 * (2 * m + 1) + b)
            q = [f"v{QB+4*j+r}" for j in js for r in range(4)]
            if m < 4:
                p = [f"v{PB+4*j+r}" for j in js for r in range(4)]
                dst = PB + 4 * js[0]
            else:
                base = PB + 16 * (gi % 2)
                p = [f"v{base+i}" for i in range(8)]
                dst = base + 8
                L += [V("v_accvgpr_read_b32", p[4 * u + r], f"a{144+4*(js[u]-16)+r}") for u in range(2) for r in range(4)]
            eb = 8 * (gi % 2)
            e = [f"v{eb+i}" for i in range(8)]
            L += [V("v_sub_f32", q[i], p[i], q[i]) for i in range(8)]
            L += [V("v_fma_f32", p[i], "2.0", p[i], "-" + q[i]) for i in range(8)]
            L += pend
            L += [V("v_exp_f32", e[i], p[i]) for i in range(8)]
            L += [V("v_fma_f32", e[i], e[i], sC, sC) for i in range(8)]
            L += [V("v_rcp_f32", e[i], e[i]) for i in range(8)]
            L += [V("v_mul_f32", p[i], p[i], e[i]) for i in range(8)]
            L += [V("v_cvt_pk_bf16_f32", e[i], p[2 * i], p[2 * i + 1]) for i in range(4)]
            a, pend = stage(eb, dst, b, m, 0)
            L += a
            gi += 1
    fill(L, 72 * 27 + 4, NM - 1)

    T = [I("", "fence")] + stamp()
    dppl = "row_shl:1 row_mask:0xf bank_mask:0xf bound_ctrl:1"
    gi = 0
    for m in range(9):
        for b in range(2):
            js = (2 * (2 * m) + b, 2 * (2 * m + 1) + b)
            base = 0 + 16 * (gi % 2)
            p = [f"v{base+i}" for i in range(8)]
            e = [f"v{base+8+i}" for i in range(8)]
            dst = PB + 32 + 4 * (gi % 4)
            T += [V("v_accvgpr_read_b32", p[4 * u + r], f"a{4*js[u]+r}") for u in range(2) for r in range(4)]
            T += [V("v_sub_f32_dpp", p[i], p[i], p[i], mod=dppl) for i in range(8)]
            T += [V("v_pk_add_f32", R("v", base + 4 * u + r, 2), R("v", base + 4 * u + r, 2), R("v", QB + 4 * js[u] + r, 2)) for u in range(2) for r in (0, 2)]
            T += pend
            T += [V("v_exp_f32", e[i], p[i]) for i in range(8)]
            T += [V("v_pk_fma_f32", R("v", base + 8 + i, 2), R("v", base + 8 + i, 2), sC2, sC2) for i in (0, 2, 4, 6)]
            T += [V("v_rcp_f32", e[i], e[i]) for i in range(8)]
            T += [V("v_pk_mul_f32", R("v", base + i, 2), R("v", base + i, 2), R("v", base + 8 + i, 2)) for i in (0, 2, 4, 6)]
            T += [V("v_cvt_pk_bf16_f32", e[i], p[2 * i], p[2 * i + 1]) for i in range(4)]
            a, pend = stage(base + 8, dst, b, m, 1)
            T += a
            gi += 1
    T += pend
    if c["stamps"]:
        T += stamp()
        T.append(I("", "drain"))
        T += stamp()
        T.append(RAW("s_waitcnt lgkmcnt(0)", "wait"))
        if c["diag"]:
            a, b, mult = c["diag"]
            T += [S("s_sub_u32", "s3", f"s{sRT[b]}", f"s{sRT[a]}"), S("s_mul_i32", "s3", "s3", mult), S("s_min_u32", "s3", "s3", 20000),
                  RAW("L_diag:", "label"), RAW("s_memrealtime s[4:5]", "salu"), RAW("s_waitcnt lgkmcnt(0)", "wait"),
                  S("s_sub_u32", "s4", "s4", f"s{sRT[7]}"), S("s_cmp_lt_u32", "s4", "s3"), RAW("s_cbranch_scc1 L_diag", "salu")]
        for k in range(8): T.append(V("v_mov_b32", f"v{k}", f"s{sSTAMP+2*k}"))
        for k in range(8): T.append(V("v_mov_b32", f"v{8+k}", f"s{sRT[k]}"))
        T += [S("s_lshl_b32", sT[0], "s2", 8), S("s_lshl_b32", sT[1], sWAVE, 6), S("s_add_u32", sT[0], sT[0], sT[1]), S("s_add_u32", sT[0], sT[0], 1 << 22),
              S("s_mov_b32", "s18", 1 << 23), V("v_mov_b32", "v16", 0), RAW("s_mov_b64 exec, 1", "salu")]
        for k in range(4): T.append(BST("buffer_store_dwordx4", R("v", 4 * k, 4), "v16", SG, sT[0], 16 * k))

    prog = list(P)
    for g in range(G0, NM):
        if g >= 0: prog.append(mf[g])
        gp = gaps[g]
        if c["ablr"][0] * 72 <= g < c["ablr"][1] * 72:
            drop = lambda i: (("v" in c["abl"] and i.kind in VALUK + ("dsw", "vst")) or ("r" in c["abl"] and i.kind == "dsr" and "a" in i.txt.split()[1])
                              or ("h" in c["abl"] and i.kind == "dsr" and "a" in i.txt.split()[1] and (g >> 1) & 1)
                              or ("d" in c["abl"] and i.kind == "dma") or ("x" in c["abl"] and i.kind == "dma" and i.tag[0] == "X")
                              or ("w" in c["abl"] and i.kind == "dma" and i.tag[0] == "W") or ("s" in c["abl"] and i.kind == "vst"))
            gp.mem = [i for i in gp.mem if not drop(i)]; gp.valu = [i for i in gp.valu if not drop(i)]
            if "n" in c["abl"] and g in barrier: barrier[g] = ([], [])
            if "b" in c["abl"] and g in barrier:
                prog.append(WAITPT(*barrier[g])); prog += gp.pre + gp.mem + gp.valu + gp.post
                continue
        if g in barrier:
            prog += [WAITPT(*barrier[g]), BAR()]
        elif g % 2 == 1 and g >= -1:
            prog.append(WAITPT(vm=waits.get(g, [])))
        prog += gp.pre + gp.mem + gp.valu + gp.post
    prog += T
    last = {}
    for it in prog:
        if id(it) in expect:
            for r, w in expect[id(it)].items(): assert last[r] is w, (it.txt, r, last[r].txt, w.txt)
        for r in it.wr: last[r] = it
    stats = {"fills": fills[:5] + fills[-1:]}
    prog = pad_hazards(insert_waits(prog, stats), stats)

    if c["pf2"]:
        size = lambda i: 0 if i.kind == "label" else (4 if i.kind in ("wait", "nop", "bar", "trans") else 8 if i.kind != "valu" else 6)
        total = sum(size(i) for i in prog)
        out, off, page = [], 0, 2
        for k, it in enumerate(prog):
            out.append(it); off += size(it)
            if it.kind == "mfma" and prog[k + 1].kind not in ("salu", "wait") and off >= page * 4096 - c["pfd"] - 4096 and page <= 17:
                if "a" in c["pf2"]: out.append(RAW(f"s_load_dword s76, s[0:1], {page * 4096}", "salu"))
                if "b" in c["pf2"] and page < 17: out.append(RAW(f"s_load_dword s77, s[78:79], {page * 4096}", "salu"))
                page += 1
        prog = out

    Z = []
    A = Z.append
    A(RAW("L_slow:", "label"))
    A(S("s_mov_b32", sT[4], c["spin"]))
    A(RAW("L_spin:", "label"))
    A(V("v_lshlrev_b32", vPOLL, 7, sH))
    A(BLD("buffer_load_dword", vPOLL, vPOLL, SD, 0, flags="sc1"))
    A(I("", "drain"))
    A(V("v_readfirstlane_b32", sT[0], vPOLL))
    A(S("s_sub_u32", sT[4], sT[4], 1))
    A(S("s_cmp_ge_u32", sT[0], 81)); A(RAW("s_cbranch_scc1 L_back", "salu"))
    A(S("s_cmp_lg_u32", sT[4], 0)); A(RAW("s_cbranch_scc1 L_spin", "salu"))
    A(S("s_and_b32", sT[4], sWAVE, 1)); A(S("s_mul_i32", sPN, sT[4], 9)); A(S("s_add_u32", sT[4], sPN, 9))
    A(V("v_lshrrev_b32", "v238", 4, vWLO)); A(V("v_and_b32", "v239", 15, "v238")); A(V("v_lshlrev_b32", "v239", 1, "v239"))
    A(V("v_lshrrev_b32", "v238", 4, "v238")); A(V("v_mul_u32_u24", "v238", 8 * ROW, "v238")); A(V("v_add_u32", "v238", "v238", "v239"))
    A(RAW("L_fn:", "label"))
    A(S("s_mov_b32", sPK, 0))
    A(RAW("L_fk:", "label"))
    Z += prod_addr()
    A(V("v_add_u32", "v255", sT[2], "v239"))
    A(GLD("global_load_ushort", "v253", "v255", "s[70:71]")); A(GLD("global_load_ushort", "v254", "v255", "s[72:73]"))
    for tap in range(3):
        for j in range(8):
            A(BLD("buffer_load_ushort", f"v{200+8*tap+j}", "v238", SW, sPSRC))
            A(S("s_add_u32", sPSRC, sPSRC, ROW if j < 7 else TAP - 7 * ROW))
    A(S("s_add_u32", sPSRC, sPDST, SLOT // 2))
    A(I("", "drain"))
    for i in list(range(200, 224)) + [253, 254]: A(V("v_lshlrev_b32", f"v{i}", 16, f"v{i}"))
    Z += scale_calc("v253", "v254", None)
    A(V("v_mul_f32", "v253", f2u(-LOG2E / 2), "v253"))
    for j in range(4):
        pr = lambda tap: (f"v{200+8*tap+2*j}", f"v{201+8*tap+2*j}")
        Z += prod_pair(pr(0), pr(1), pr(2), "v253", f"v{224+j}", f"v{228+j}", f"v{232+j}", ("v236", "v237"))
    Z += prod_store(SG, 224)
    A(I("", "drain"))
    A(S("s_add_u32", sPK, sPK, 1)); A(S("s_cmp_lt_u32", sPK, 18)); A(RAW("s_cbranch_scc1 L_fk", "salu"))
    A(S("s_add_u32", sPN, sPN, 1)); A(S("s_cmp_lt_u32", sPN, sT[4])); A(RAW("s_cbranch_scc1 L_fn", "salu"))
    A(RAW("s_branch L_back", "salu"))
    Z = pad_hazards(insert_waits(Z))

    head = open("standalone__batchnorm__sampling.s.ref").read().split("; Override")[0]
    def text(prog, extra=()):
        o = [head + "; @launch grid=(256,1,1) block=(256,1,1) lds=163840", '.amdgcn_target "amdgcn-amd-amdhsa--gfx950"', ".text", f".globl {NAME}"]
        o += [".p2align 12"] if c["align"] else []
        o += [".p2align 8", f".type {NAME},@function", f"{NAME}:", "s_cmp_lt_u32 s2, 256", "s_cbranch_scc1 L_go", "s_endpgm", "L_go:"]
        o += [i.txt for i in prog]
        o += ["s_endpgm"] + [i.txt for i in Z] + ["L_codeend:"] + list(extra) + ["s_endpgm"]
        o += ['.section .rodata,"a"', ".p2align 6", f".amdhsa_kernel {NAME}", "  .amdhsa_next_free_vgpr 512", "  .amdhsa_next_free_sgpr 102",
              "  .amdhsa_accum_offset 256", "  .amdhsa_group_segment_fixed_size 0", "  .amdhsa_kernarg_size 72", "  .amdhsa_user_sgpr_count 2",
              "  .amdhsa_user_sgpr_kernarg_segment_ptr 1", "  .amdhsa_system_sgpr_workgroup_id_x 1", ".end_amdhsa_kernel", ""]
        return "\n".join(o)
    if vret:
        sz = iter(sizes(text(prog, [f"L_pg{p}:" for p in vret]))[3:])
        size = [0 if i.kind == "label" else next(sz) for i in prog]
        out, off, todo = [], c["kofs"] + 16, sorted(vret)
        for k, it in enumerate(prog):
            if todo and off >= 4096 * todo[0]:
                good = prog[k - 1].kind == "mfma" and it.kind not in ("salu", "wait", "bar")
                o2, later = off, False
                for j in range(k, k + 16):
                    o2 += size[j]
                    if o2 > 4096 * todo[0] + 28: break
                    if prog[j].kind == "mfma" and prog[j + 1].kind not in ("salu", "wait", "bar"): later = True
                if good or not later:
                    p = todo.pop(0)
                    out += [RAW(f"L_pg{p}:", "label"), RAW(f"s_cbranch_vccnz {vret[p]}", "salu")]
                    off += 4
            out.append(it); off += size[k]
        assert not todo
        prog = out
        stats["end"] = hex(off)
    return text(prog), stats

def sizes(txt):
    import subprocess, tempfile, re, os
    d = tempfile.mkdtemp()
    open(d + "/a.s", "w").write(txt)
    subprocess.run(["clang", "-target", "amdgcn-amd-amdhsa", "-mcpu=gfx950", "-c", d + "/a.s", "-o", d + "/a.o"], check=True)
    dis = subprocess.run(["llvm-objdump", "-d", d + "/a.o"], capture_output=True, text=True).stdout
    return [4 * len(m.group(1).split()) for m in re.finditer(r"// [0-9A-F]{12}: ((?:[0-9A-F]{8} ?)+)", dis)]

if __name__ == "__main__":
    out = sys.argv[1]
    kw = {}
    for a in sys.argv[2:]:
        k, v = a.split("=", 1)
        kw[k] = eval(v)
    txt, stats = gen(**kw)
    open(out, "w").write(txt)
    nl = stats.pop("noplist", [])
    print(out, len(txt), "bytes", txt.count("\n"), "lines", stats)
    for x in nl:
        if x[0] > 450: print("  nop", x)
```

```python
import re

def regs(spec):
    spec = spec.strip().lstrip('-')
    m = re.fullmatch(r'([vas])\[(\d+):(\d+)\]', spec)
    if m:
        return [f"{m.group(1)}{i}" for i in range(int(m.group(2)), int(m.group(3)) + 1)]
    if re.fullmatch(r'[vas]\d+', spec) or spec in ('m0', 'vcc', 'exec'):
        return [spec]
    return []

def R(c, i, n=1):
    return f"{c}{i}" if n == 1 else f"{c}[{i}:{i+n-1}]"

class I:
    __slots__ = ("txt", "kind", "rd", "wr", "tag", "srcc", "cost")
    def __init__(self, txt, kind, rd=(), wr=(), tag=None, srcc=(), cost=4):
        self.txt, self.kind, self.tag, self.cost = txt, kind, tag, cost
        self.rd, self.wr, self.srcc = set(rd), set(wr), set(srcc)

def _ops(dst, srcs):
    rd = []
    for s in srcs:
        rd += regs(str(s))
    return rd, regs(dst)

def V(op, dst, *srcs, mod="", rmw=False):
    rd, wr = _ops(dst, srcs)
    if rmw:
        rd += wr
    kind = "valu"
    cost = 4
    if re.match(r'v_(exp|log|rcp|rsq|sqrt)_f32', op):
        kind, cost = "trans", 8
    if op.endswith("_dpp"):
        kind = "dpp"
    if op.startswith("v_permlane"):
        kind = "dpp"
        rd = rd + wr
        wr = list(rd)
    return I(f"{op} {dst}, " + ", ".join(str(s) for s in srcs) + (" " + mod if mod else ""), kind, rd, wr, cost=cost)

def S(op, dst, *srcs):
    rd, wr = _ops(dst, srcs)
    if op.startswith("s_cmp"):
        rd += wr
        wr = []
    return I(f"{op} {dst}" + "".join(f", {s}" for s in srcs), "salu", rd, wr)

def RAW(txt, kind="misc", rd=(), wr=()):
    return I(txt, kind, rd, wr)

def MFMA(d, a, b, c):
    rd = regs(a) + regs(b) + regs(str(c))
    return I(f"v_mfma_f32_16x16x32_bf16 {d}, {a}, {b}, {c}", "mfma", rd, regs(d), srcc=regs(str(c)))

def DSR(op, dst, addr, off=0, tag=None):
    assert 0 <= off < 65536, off
    return I(f"{op} {dst}, {addr}" + (f" offset:{off}" if off else ""), "dsr", regs(addr), regs(dst), tag=tag)

def DSW(op, addr, src, off=0, tag=None, cost=12):
    assert 0 <= off < 65536
    return I(f"{op} {addr}, {src}" + (f" offset:{off}" if off else ""), "dsw", regs(addr) + regs(src), [], tag=tag, cost=cost)

def DMA(voff, srd, soff, off=0, tag=None, flags=""):
    assert 0 <= off < 4096
    return I(f"buffer_load_dwordx4 {voff}, {srd}, {soff} offen" + (f" offset:{off}" if off else "") + (" " + flags if flags else "") + " lds",
             "dma", regs(voff) + regs(srd) + regs(str(soff)) + ["m0"], [], tag=tag, cost=8)

def BLD(op, dst, voff, srd, soff, off=0, tag=None, flags="", rmw=False):
    assert 0 <= off < 4096
    return I(f"{op} {dst}, {voff}, {srd}, {soff} offen" + (f" offset:{off}" if off else "") + (" " + flags if flags else ""),
             "vld", regs(voff) + regs(srd) + regs(str(soff)), regs(dst), tag=tag, cost=8)

def GLD(op, dst, voff, sbase, tag=None, flags=""):
    return I(f"{op} {dst}, {voff}, {sbase}" + (" " + flags if flags else ""), "vld", regs(voff) + regs(sbase), regs(dst), tag=tag, cost=8)

def BST(op, src, voff, srd, soff, off=0, tag=None, flags="", cost=20):
    assert 0 <= off < 4096
    return I(f"{op} {src}, {voff}, {srd}, {soff} offen" + (f" offset:{off}" if off else "") + (" " + flags if flags else ""),
             "vst", regs(src) + regs(voff) + regs(srd) + regs(str(soff)), [], tag=tag, srcc=regs(src), cost=cost)

def WAITPT(vm=(), ds=()):
    return I("", "waitpt", tag=(tuple(vm), tuple(ds)))

def WAITTAG(vm=(), ds=()):
    return I("", "waittag", tag=(tuple(vm), tuple(ds)))

BAR = lambda: I("s_barrier", "bar")

def insert_waits(prog, stats=None):
    out = []
    dsq, vmq = [], []
    ds_done = vm_done = 0
    dreg, vreg = {}, {}
    dtag, vtag = {}, {}
    n = len(prog)
    def need(ins):
        a = b = -1
        for r in ins.rd | ins.wr:
            a = max(a, dreg.get(r, -1)); b = max(b, vreg.get(r, -1))
        return a, b
    def emit(a, b, adhoc):
        nonlocal ds_done, vm_done
        parts = []
        if b >= vm_done:
            c = len(vmq) - 1 - b
            assert c < 63, c
            parts.append(f"vmcnt({c})"); vm_done = b + 1
        if a >= ds_done:
            c = min(len(dsq) - 1 - a, 15)
            assert c < 15, ("lgkm overflow", c)
            parts.append(f"lgkmcnt({c})"); ds_done = a + 1
        if parts:
            out.append(I("s_waitcnt " + " ".join(parts), "wait"))
            if stats is not None:
                stats["adhoc" if adhoc else "waits"] = stats.get("adhoc" if adhoc else "waits", 0) + 1
    for k, ins in enumerate(prog):
        if ins.kind in ("waitpt", "waittag"):
            a = b = -1
            for t in ins.tag[0]:
                b = max(b, vtag.get(t, -1))
            for t in ins.tag[1]:
                a = max(a, dtag[t])
            if ins.kind == "waitpt":
                j = k + 1
                while j < n and prog[j].kind not in ("waitpt", "fence"):
                    x, y = need(prog[j]); a = max(a, x); b = max(b, y); j += 1
            emit(a, b, False)
            continue
        if ins.kind == "fence":
            continue
        if ins.kind == "drain":
            out.append(I("s_waitcnt vmcnt(0) lgkmcnt(0)", "wait"))
            ds_done, vm_done = len(dsq), len(vmq)
            continue
        a, b = need(ins)
        if ins.kind == "dsr":
            a = max([dreg.get(r, -1) for r in ins.rd] + [-1])
        if ins.kind == "vld":
            b = max([vreg.get(r, -1) for r in ins.rd] + [-1])
        if ins.kind in ("dsr", "dsw") and len(dsq) - ds_done >= 15:
            a = max(a, len(dsq) - 13)
        if ins.kind in ("dma", "vld", "vst") and len(vmq) - vm_done >= 62:
            b = max(b, len(vmq) - 60)
        emit(a, b, True)
        out.append(ins)
        if ins.kind in ("dsr", "dsw"):
            dsq.append(ins)
            for r in ins.wr: dreg[r] = len(dsq) - 1
            if ins.tag: dtag[ins.tag] = len(dsq) - 1
        if ins.kind in ("dma", "vld", "vst"):
            vmq.append(ins)
            for r in ins.wr: vreg[r] = len(vmq) - 1
            if ins.tag: vtag[ins.tag] = len(vmq) - 1
    return out

VALUK = ("valu", "trans", "dpp")

def pad_hazards(prog, stats=None):
    out = []
    def states(ins):
        m = re.match(r's_nop (\d+)', ins.txt)
        if m: return int(m.group(1)) + 1
        return 0 if ins.kind == "label" else 1
    for ins in prog:
        need = 0
        dist = 0
        for p in reversed(out[-24:]):
            req = 0
            if p.kind in VALUK:
                if ins.kind == "mfma" and p.wr & ins.rd: req = 2
                if ins.kind == "dpp" and p.wr & ins.rd: req = 2
                if p.kind == "trans" and ins.kind in VALUK + ("dsw", "vst") and p.wr & ins.rd: req = max(req, 1)
                if ins.txt.startswith(("v_readfirstlane", "v_readlane")) and p.wr & ins.rd: req = max(req, 1)
                sw = {r for r in p.wr if r[0] == 's' or r == 'vcc'}
                if sw & ins.rd:
                    if ins.kind in ("dma", "vld", "vst"): req = max(req, 5)
                    elif ins.kind in VALUK: req = max(req, 2)
            if p.kind == "mfma":
                if ins.kind in VALUK and p.wr & (ins.rd | ins.wr): req = 8
                if ins.kind in ("dsr", "dsw", "vst", "vld", "dma") and p.wr & (ins.rd | ins.wr): req = 8
                if ins.kind == "mfma":
                    if p.wr & (ins.rd - ins.srcc): req = 8
                    elif p.wr & ins.srcc and p.wr != ins.srcc: req = 6
                if ins.kind in VALUK and p.srcc & ins.wr: req = max(req, 3)
            if p.kind == "salu" and "m0" in p.wr and ins.kind == "dma": req = 1
            if p.kind == "vst" and len(p.srcc) >= 3 and p.srcc & ins.wr: req = max(req, 2)
            need = max(need, req - dist)
            dist += states(p)
        if need > 0:
            out.append(I(f"s_nop {need-1}", "nop"))
            if stats is not None:
                stats["nops"] = stats.get("nops", 0) + 1
                stats.setdefault("noplist", []).append((len(out), need, ins.txt))
        out.append(ins)
    return out

class Pair:
    kind = "pair"
    cost = 8
    def __init__(self, pk, plain):
        self.pk, self.plain = pk, plain
```

```python
import sys, struct
from asmlib import *

def f2u(x):
    return "0x%08x" % struct.unpack("<I", struct.pack("<f", x))[0]

NAME = "standalone__batchnorm__sampling_kernel"
LOG2E = 1.4426950408889634
ROW = 1152
BATCH = 36864
TAP = 663552
SLOT = 36864
GHALF = 27 * SLOT
XLDS = 3 * SLOT
STG = XLDS + 4 * 12288
NSTEP = 36

SX, SW, SG, SGS, SO, SD = "s[8:11]", "s[12:15]", "s[16:19]", "s[20:23]", "s[24:27]", "s[28:31]"
sWAVE, sH, sRB, sLW, sWB, sGB, sXL = "s40", "s41", "s42", "s43", "s46", "s47", "s48"
sXB = [["s44", "s45"], ["s63", "s83"]]
sSTG = "s82"
sOB = ["s49", "s50"]
sSP1, sGA, sGBb, sGC = "s51", "s52", "s53", "s54"
sMASK = "s55"
sC2, sC = "s[56:57]", "s56"
sPN, sPK, sPSRC, sPDST, sPDST2 = "s58", "s59", "s60", "s61", "s62"
sT = ["s3", "s4", "s5", "s6", "s7"]
sSTAMP = 84
sRT = [100, 32, 34, 36, 38, 64, 66, 80]
vWLO, vWHI, vXDMA, vST, vS0, vS1, vSR, vTAB = "v32", "v33", "v36", "v37", "v38", "v39", "v40", "v41"
vXR = ["v34", "v35"]
TMP = 42
vPOLL = "v252"
QB, PB = 48, 192
vW1, vTR, vTF, vAOFF, vONE = "v192", 193, "v36", "v198", "v199"

def Qt(j): return R("v", QB + 4 * j, 4)
def Pt(j): return R("v", PB + 4 * j, 4) if j < 16 else R("a", 144 + 4 * (j - 16), 4)
def Es(kk, b): return R("a", 8 * kk + 4 * b, 4)
def Rq(m, u, b): return (0 if m & 1 else 16) + 8 * u + 4 * b
def Wf(F): return 224 + 4 * (F % 8)
def phase(s): return 1 if s < 9 else (2 if s < 27 else 3)

DEF = dict(LA=6, stamps=False, nosignal=False, spin=4000, pos=(1, 3, 6, 8, 11, 13, 16, 18, 21, 24, 27, 30, 33), swap=True, prodr=(12, 110),
           gflags="sc1", stflags="sc1", rt=False, diag=None, abl="", ablr=(0, 0), pf_w=False, pf_code=True, pollwin=5, sigwin=3, xflags="", at=(), pf2="b", pfd=0, visit=(1, 2, 3, 4), vlate=2, pf1=0, align=True, kofs=0x300, chain=True, out="lds", pk=True, eps=0.002, stc=20, stpos=4, pos9=(1, 5, 9, 13, 17, 21, 25, 29, 33), ny0=(4, 2, 2, 2, 2, 2, 2, 1, 1))

class Gap:
    def __init__(self):
        self.pre, self.mem, self.valu, self.post = [], [], [], []
    def used(self):
        return sum(i.cost for i in self.mem + self.valu)

def scale_calc(var, g, t):
    def rnd(r): return [V("v_cvt_pk_bf16_f32", r, r, r), V("v_and_b32", r, sMASK, r)]
    L = [V("v_add_f32", var, f2u(1e-5), var)] + rnd(var)
    L += [V("v_sqrt_f32", var, var)] + rnd(var)
    L += [V("v_rcp_f32", var, var)] + rnd(var)
    L += [V("v_mul_f32", var, g, var)] + rnd(var)
    return L

def prod_pair(a, b, c, sh, o1, o2, o3, t):
    L = []
    for e in range(2):
        L.append(V("v_add_f32", a[e], a[e], c[e]))
    for e in range(2):
        L.append(V("v_mul_f32", a[e], a[e], sh))
    for e in range(2):
        L.append(V("v_mul_f32", c[e], c[e], sh))
    for e in range(2):
        L.append(V("v_fma_f32", t[e], b[e], sh, a[e]))
    for e in range(2):
        L.append(V("v_fma_f32", a[e], "-" + b[e], sh, a[e]))
    for e in range(2):
        L.append(V("v_add_f32", c[e], c[e], c[e]))
    L.append(V("v_cvt_pk_bf16_f32", o1, t[0], t[1]))
    L.append(V("v_cvt_pk_bf16_f32", o2, a[0], a[1]))
    L.append(V("v_cvt_pk_bf16_f32", o3, c[0], c[1]))
    return L

def prod_addr():
    L = [S("s_mul_i32", sPSRC, sPK, 32 * ROW), S("s_lshl_b32", sT[0], sPN, 5), S("s_add_u32", sPSRC, sPSRC, sT[0]),
         S("s_mul_i32", sT[1], sH, 576), S("s_add_u32", sPSRC, sPSRC, sT[1]), S("s_add_u32", sT[2], sT[0], sT[1]),
         S("s_mul_i32", sT[1], sH, GHALF), S("s_lshl_b32", sT[0], sPN, 10), S("s_add_u32", sT[1], sT[1], sT[0]),
         S("s_mul_i32", sPDST, sPK, SLOT), S("s_add_u32", sPDST, sPDST, sT[1]),
         S("s_lshr_b32", sPDST2, sPN, 1), S("s_mul_i32", sPDST2, sPDST2, SLOT - 2048), S("s_add_u32", sT[1], sT[1], sPDST2),
         S("s_lshl_b32", sPDST2, sPK, 11), S("s_add_u32", sPDST2, sPDST2, sT[1]), S("s_add_u32", sPDST2, sPDST2, 18 * SLOT)]
    return L

def prod_store(srd, o, tag=None):
    return [BST("buffer_store_dwordx4", R("v", o, 4), vWLO, srd, sPDST, flags="sc1"),
            BST("buffer_store_dwordx4", R("v", o + 4, 4), vWLO, srd, sPSRC, flags="sc1"),
            BST("buffer_store_dwordx4", R("v", o + 8, 4), vWLO, srd, sPDST2, flags="sc1", tag=tag)]

def gen(**kw):
    c = dict(DEF); c.update(kw)
    LA = c["LA"]
    nstamp = [0]
    def stamp(custom=False):
        if not c["stamps"] or (bool(c["at"]) != custom and nstamp[0] > 0): return []
        k = nstamp[0]; nstamp[0] += 1
        assert k < 8
        return [RAW(f"s_memtime s[{sSTAMP+2*k}:{sSTAMP+2*k+1}]", "salu"), RAW(f"s_memrealtime s[{sRT[k]}:{sRT[k]+1}]", "salu")]

    g0 = lambda s: 72 * s - 2 * LA - 1
    ev = lambda s, e: g0(s) + 1 + 2 * e
    def w_dmas(s):
        slot = (s % 3) * SLOT
        out = []
        if phase(s) == 1:
            for m in range(9):
                early = [S("s_add_u32", sSP1, sWB, 64 * s * ROW)] if m == 0 else []
                out.append([early, (sLW, slot + 960 * m), DMA(vW1, SW, sSP1, 64 * m, tag=f"W{s}")])
        else:
            sr = [sGA, sGBb, sGC]
            for i in range(9):
                early = [S("s_add_u32", sr[i // 4], sGB, (s - 9) * SLOT + 1024 * i)] if i % 4 == 0 else []
                out.append([early, (sLW, slot + 4096 * (i // 4)), DMA(vWLO, SG, sr[i // 4], 1024 * (i % 4), tag=f"W{s}", flags=c["gflags"])])
        return out
    def m0set(spec):
        return S("s_add_u32", "m0", spec[0], spec[1]) if spec[1] >= 0 else S("s_sub_u32", "m0", spec[0], -spec[1])

    quads = {}
    for s in range(27):
        if s < 9: quads[s] = [0, 4, 8, 12]
        elif s == 9: quads[s] = [16, 20, 24, 28]
        else:
            q = quads[s - 2]
            quads[s] = [q[0], q[2], q[1], q[3]]

    class Gran:
        def __init__(self, name, b, par, ch, reads):
            self.name, self.b, self.par, self.ch, self.reads, self.slot = name, b, par, ch, reads, None
        def dmas(self):
            imm = self.par * ROW + 128 * self.ch
            return [[[], (self, 1024 * i - imm), DMA(vXDMA, SX, sXB[self.b][i], imm, tag="X" + self.name, flags=c["xflags"])] for i in range(2)]
        def read(self, k):
            _, q, kk = self.reads[k]
            return DSR("ds_read_b128", R("v", q, 4), vXR[kk], 2048 * self.slot)
    gr = {}
    for s in range(27):
        F0, F1, S0, S1 = quads[s]
        if phase(s) != 2:
            par, ch = 1, s
            gr[f"A{s}"] = Gran(f"A{s}", 0, par, ch, [(ev(s, 0), F0, 0), (ev(s, LA + 3), S0, 1)])
            gr[f"B{s}"] = Gran(f"B{s}", 1, par, ch, [(ev(s, 2), F1, 0), (ev(s, LA + 4), S1, 1)])
        elif s % 2 == 1:
            ch = (s - 9) // 2
            N0, N1, T0, T1 = quads[s + 1]
            e0, e1 = (4, 5) if s == 9 else (0, 2)
            gr[f"AE{ch}"] = Gran(f"AE{ch}", 0, 0, ch, [(ev(s - 1, e0), F0, 0), (ev(s, 0), N0, 1)])
            gr[f"AO{ch}"] = Gran(f"AO{ch}", 0, 1, ch, [(ev(s - 1, e1), S0, 0), (ev(s, 2), T0, 1)])
            gr[f"BE{ch}"] = Gran(f"BE{ch}", 1, 0, ch, [(ev(s - 1, 17), F1, 0), (ev(s, 17), N1, 1)])
            gr[f"BO{ch}"] = Gran(f"BO{ch}", 1, 1, ch, [(ev(s - 1, 19), S1, 0), (ev(s, 19), T1, 1)])
    gr["PR"] = Gran("PR", 0, 0, 0, [(c["prodr"][0], 0, 0)])
    X = lambda *names: [d for n in names if n in gr for d in gr[n].dmas()]
    busy = [-10**6] * 6
    def alloc(g, when):
        if g.slot is None:
            free = [i for i in range(6) if busy[i] <= when]
            assert free, ("no x slot", g.name, when, busy)
            g.slot = free[0]
            busy[g.slot] = max(r[0] for r in g.reads) + 14
    def resolve(item, when):
        if isinstance(item[1][0], Gran):
            alloc(item[1][0], when)
            item[1] = (sXL, 2048 * item[1][0].slot + item[1][1])
    expect = {}
    def flat(dl):
        L = []
        for it in dl:
            resolve(it, -1000)
            L += it[0] + [m0set(it[1]), it[2]]
        return L
    usel = lambda f: (f & 1) ^ ((f >> 1) & 1 if c["chain"] else 0)
    def w_reads(F):
        s, f = divmod(F, 36)
        slot = (s % 3) * SLOT
        if phase(s) == 1:
            kk, n = divmod(f, 18)
            m, u = n >> 1, n & 1
            hi = 1 if s % 3 == 2 else 0
            off = (0 if hi else slot) + kk * 18432 + m * 1024
            return [DSR("ds_read_b64_tr_b16", R("a", Wf(F) + 2 * hf, 2), f"v{vTR + 2 * hi + u}", off + 256 * hf) for hf in range(2)]
        off = slot + 1024 * (f if phase(s) == 2 else (f & ~1) + usel(f))
        return [DSR("ds_read_b128", R("a", Wf(F), 4), vWLO if off < 65536 else vWHI, off & 65535)]

    vret = {}
    def visit(r, pages):
        L = [RAW("s_mov_b64 vcc, 1", "salu")]
        for w, p in enumerate(pages):
            vret[p] = f"L_vr{r}"
            if w < 3: L += [S("s_cmp_eq_u32", sWAVE, w), RAW(f"s_cbranch_scc1 L_pg{p}", "salu")]
            else: L.append(RAW(f"s_branch L_pg{p}", "salu"))
        return L + [RAW(f"L_vr{r}:", "label"), RAW("s_mov_b64 vcc, 0", "salu")]
    def vround(pt):
        L = []
        for r, x in enumerate(c["visit"]):
            if x == pt: L += visit(r, [p for p in range(4 * r + 1, 4 * r + 5) if p <= 15])
        return L

    P = []
    A = P.append
    P += stamp()
    A(RAW("s_load_dwordx4 s[64:67], s[0:1], 0", "salu"))
    if c["pf_code"]:
        A(RAW("s_getpc_b64 s[4:5]", "salu", wr=["s4", "s5"]))
        A(RAW("L_pc:", "label"))
        A(S("s_lshr_b32", "s3", "s2", 3)); A(S("s_mul_i32", "s3", "s3", 20 * 128))
        A(V("v_min_u32", "v14", 19, "v0")); A(V("v_lshl_add_u32", "v14", "v14", 7, "s3"))
        A(V("v_min_u32", "v14", "L_codeend-L_pc-4", "v14"))
        A(GLD("global_load_dword", "v254", "v14", "s[4:5]"))
        if c["pf1"]:
            A(S("s_and_b32", "s4", "s4", "0xfffff000"))
            A(V("v_and_b32", "v14", 63, "v0")); A(V("v_min_u32", "v14", 15, "v14")); A(V("v_lshlrev_b32", "v14", 12, "v14"))
            A(V("v_lshrrev_b32", "v15", 6, "v0")); A(V("v_min_u32", "v15", c["pf1"] - 1, "v15")); A(V("v_lshl_add_u32", "v14", "v15", 7, "v14"))
            A(V("v_add_u32", "v14", 4096, "v14"))
            A(GLD("global_load_dword", "v253", "v14", "s[4:5]"))
    A(RAW("s_load_dwordx8 s[68:75], s[0:1], 16", "salu"))
    A(RAW("s_load_dwordx4 s[76:79], s[0:1], 48", "salu"))
    A(RAW("s_load_dwordx2 s[80:81], s[0:1], 64", "salu"))
    A(V("v_lshrrev_b32", "v1", 6, "v0"))
    A(V("v_and_b32", "v2", 63, "v0"))
    A(V("v_readfirstlane_b32", sWAVE, "v1"))
    A(S("s_bfe_u32", sH, "s2", "0x10003"))
    A(S("s_lshr_b32", sRB, "s2", 4)); A(S("s_and_b32", sT[0], "s2", 7)); A(S("s_lshl3_add_u32", sRB, sRB, sT[0]))
    A(V("v_lshrrev_b32", "v3", 2, "v2"))
    A(V("v_and_b32", "v4", 3, "v2"))
    A(V("v_lshrrev_b32", "v5", 4, "v2"))
    A(V("v_and_b32", "v6", 15, "v2"))
    A(S("s_lshl2_add_u32", sT[3], sRB, sWAVE))
    A(S("s_mul_i32", sT[4], sT[3], 2 * BATCH))
    A(S("s_mul_i32", sT[1], sH, BATCH if c["swap"] else 0))
    A(S("s_add_u32", sXB[0][0], sT[4], sT[1])); A(S("s_sub_u32", sXB[1][0], BATCH, sT[1])); A(S("s_add_u32", sXB[1][0], sXB[1][0], sT[4]))
    A(S("s_add_u32", sXB[0][1], sXB[0][0], 16 * ROW)); A(S("s_add_u32", sXB[1][1], sXB[1][0], 16 * ROW))
    A(S("s_mul_i32", sXL, sWAVE, 12288)); A(S("s_add_u32", sXL, sXL, XLDS))
    A(S("s_mul_i32", sLW, sWAVE, 9216))
    A(S("s_mul_i32", sT[0], sH, 576))
    A(S("s_mul_i32", sWB, sWAVE, 16 * ROW)); A(S("s_add_u32", sWB, sWB, sT[0]))
    A(S("s_add_u32", sOB[0], sXB[0][0], sT[0])); A(S("s_add_u32", sOB[1], sXB[1][0], sT[0]))
    A(V("v_lshrrev_b32", "v7", 3, "v2")); A(V("v_mul_u32_u24", vXDMA, 2 * ROW, "v7"))
    A(V("v_and_b32", "v7", 7, "v2")); A(V("v_lshlrev_b32", "v8", 1, "v5")); A(V("v_xor_b32", "v7", "v7", "v8")); A(V("v_lshl_add_u32", vXDMA, "v7", 4, vXDMA))
    A(V("v_and_b32", "v7", 2, "v5")); A(V("v_xor_b32", "v7", "v4", "v7"))
    A(V("v_mul_u32_u24", vW1, ROW, "v3")); A(V("v_lshl_add_u32", vW1, "v7", 4, vW1))
    A(S("s_min_u32", sT[4], sT[3], 323))
    A(S("s_mul_i32", sPK, sT[4], 3641)); A(S("s_lshr_b32", sPK, sPK, 16))
    A(S("s_mul_i32", sPN, sPK, 18)); A(S("s_sub_u32", sPN, sT[4], sPN))
    P += prod_addr()
    A(V("v_lshl_add_u32", "v8", "v6", 1, sT[2]))
    A(V("v_lshrrev_b32", "v9", 1, "v2")); A(V("v_mul_u32_u24", "v9", ROW, "v9"))
    A(V("v_and_b32", "v10", 1, "v2")); A(V("v_lshl_add_u32", "v9", "v10", 4, "v9"))
    A(S("s_lshl_b32", sSTG, sWAVE, 10)); A(S("s_add_u32", sSTG, sSTG, STG))
    def srd(base, lo, nrec):
        return [S("s_mov_b32", f"s{base}", f"s{lo}"), S("s_mov_b32", f"s{base+1}", f"s{lo+1}"),
                S("s_mov_b32", f"s{base+2}", nrec), S("s_mov_b32", f"s{base+3}", "0x20000")]
    def pfw(dst, row0, nl):
        return [S("s_lshr_b32", sT[0], "s2", 3), S("s_lshl2_add_u32", sT[0], sT[0], sWAVE), S("s_mul_i32", sT[0], sT[0], nl * 128), S("s_add_u32", sT[0], sT[0], row0 * ROW),
                V("v_lshlrev_b32", dst, 3, vWLO), V("v_min_u32", dst, (nl - 1) * 128, dst), BLD("buffer_load_dword", dst, dst, SW, sT[0])]
    A(V("v_lshlrev_b32", vWLO, 4, "v2"))
    A(RAW("s_waitcnt lgkmcnt(0)", "wait"))
    P += srd(8, 64, 1024 * BATCH) + srd(12, 66, 3 * TAP)
    if c["pf_w"]: P += pfw("v255", 64, 9)
    P += flat(X("A0", "B0")) + flat(w_dmas(0))
    P += [S("s_mov_b32", r, 0) for r in (sGA, sGBb, sGC)] if c["visit"] else []
    PA = P; P = []; A = P.append
    A(GLD("global_load_ushort", "v238", "v8", "s[70:71]")); A(GLD("global_load_ushort", "v239", "v8", "s[72:73]"))
    alloc(gr["PR"], -1000)
    for tap in range(3):
        A(m0set((sXL, 2048 * gr["PR"].slot + 1024 * tap) if tap < 2 else (sSTG, 0)))
        if tap: A(S("s_add_u32", sPSRC, sPSRC, TAP))
        A(DMA("v9", SW, sPSRC, tag="XPR"))
    A(S("s_add_u32", sPSRC, sPDST, SLOT // 2))
    w1 = w_dmas(1)
    late = vround(1) + flat(X("A1", "B1")) + vround(2) + flat(w1[:4]) + vround(3) + flat(w1[4:]) + vround(4)
    K = []
    A = K.append
    A(S("s_mov_b32", sMASK, "0xffff0000"))
    A(S("s_mov_b32", "s56", f2u(-LOG2E))); A(S("s_mov_b32", "s57", f2u(-LOG2E)))
    A(S("s_mul_i32", sGB, sH, GHALF)); A(S("s_add_u32", sGB, sGB, sLW))
    K += srd(16, 80, 2 * GHALF) + srd(20, 80, 2 * GHALF) + srd(24, 76, 1024 * BATCH) + srd(28, 78, 256)
    A(S("s_cmp_lt_u32", sT[3], 324)); A(S("s_cselect_b32", "s22", "s22", 0))
    A(V("v_add_u32", vWHI, 65536, vWLO))
    if c["pf2"]:
        A(RAW("s_getpc_b64 s[0:1]", "salu", wr=["s0", "s1"]))
        A(S("s_and_b32", "s0", "s0", "0xfffff000"))
        A(S("s_lshr_b32", sT[0], "s2", 3)); A(S("s_and_b32", sT[1], sWAVE, 1)); A(S("s_lshl1_add_u32", sT[0], sT[0], sT[1]))
        A(S("s_lshl_b32", sT[0], sT[0], 6)); A(S("s_add_u32", "s78", "s0", sT[0])); A(S("s_mov_b32", "s79", "s1"))
    A(V("v_and_b32", "v7", 6, "v6")); A(V("v_xor_b32", "v7", "v5", "v7")); A(V("v_lshlrev_b32", "v7", 4, "v7"))
    A(V("v_lshl_add_u32", "v7", "v6", 7, "v7")); A(V("v_add_u32", vXR[0], sXL, "v7")); A(V("v_xor_b32", vXR[1], 64, vXR[0]))
    A(V("v_sub_u32", "v7", 0, "v5")); A(V("v_and_b32", "v7", 3, "v7")); A(V("v_xor_b32", "v7", "v4", "v7"))
    if c["out"] == "lds":
        A(V("v_mul_u32_u24", vST, 2 * ROW, "v3")); A(V("v_lshl_add_u32", vST, "v7", 4, vST))
    else:
        A(V("v_bfrev_b32", "v7", "v5")); A(V("v_lshrrev_b32", "v7", 26, "v7")); A(V("v_mul_u32_u24", vST, 2 * ROW, "v6")); A(V("v_add_u32", vST, vST, "v7"))
    A(V("v_lshrrev_b32", "v7", 2, "v6")); A(V("v_sub_u32", "v7", 0, "v7")); A(V("v_and_b32", "v7", 3, "v7"))
    A(V("v_lshrrev_b32", "v20", 1, "v5")); A(V("v_and_b32", "v21", 1, "v5"))
    A(V("v_xor_b32", "v10", "v20", "v7")); A(V("v_lshlrev_b32", "v10", 4, "v10")); A(V("v_lshl_add_u32", "v10", "v21", 3, "v10"))
    A(V("v_lshl_add_u32", vS0, "v6", 6, "v10")); A(V("v_add_u32", vS0, sXL, vS0)); A(V("v_xor_b32", vS1, 32, vS0))
    A(V("v_add_u32", vSR, sXL, vWLO))
    A(V("v_lshlrev_b32", vTAB, 4, "v5")); A(V("v_add_u32", vTAB, STG, vTAB))
    A(V("v_and_b32", "v22", 3, "v3"))
    A(V("v_lshl_add_u32", "v23", "v21", 3, "v22")); A(V("v_lshlrev_b32", "v23", 6, "v23"))
    A(V("v_mul_u32_u24", "v24", 9216, "v20")); A(V("v_add_u32", "v23", "v23", "v24"))
    A(V("v_lshrrev_b32", "v24", 1, "v4")); A(V("v_lshl_add_u32", "v24", "v21", 1, "v24")); A(V("v_lshl_add_u32", "v23", "v24", 4, "v23"))
    A(V("v_and_b32", "v24", 1, "v4")); A(V("v_lshl_add_u32", f"v{vTR}", "v24", 3, "v23"))
    A(V("v_xor_b32", f"v{vTR+1}", 32, f"v{vTR}"))
    A(V("v_add_u32", f"v{vTR+2}", 2 * SLOT, f"v{vTR}")); A(V("v_add_u32", f"v{vTR+3}", 2 * SLOT, f"v{vTR+1}"))
    A(S("s_lshl_b32", sT[0], sH, 7)); A(V("v_mov_b32", vPOLL, sT[0])); A(S("s_cmp_lt_u32", sRB, 81)); A(S("s_cselect_b32", sT[0], sT[0], 4096))
    A(V("v_lshl_add_u32", vAOFF, "v0", 8, sT[0])); A(V("v_mov_b32", vONE, 1))
    A(V("v_lshl_add_u32", "v24", "v5", 3, "v22")); A(V("v_lshlrev_b32", "v24", 5, "v24")); A(V("v_lshl_add_u32", "v24", "v4", 3, "v24"))
    A(V("v_add_u32", "v25", sSTG, "v24")); A(V("v_add_u32", "v24", sXL, "v24"))
    A(S("s_mul_i32", sT[0], sH, 576))
    A(V("v_lshl_add_u32", "v26", "v0", 2, sT[0])); A(V("v_min_u32", "v26", 1148, "v26"))
    A(V("v_lshlrev_b32", "v27", 3, "v0")); A(V("v_add_u32", "v27", STG, "v27"))
    P = (PA + K + vround(0) + P if 0 in c["visit"] else PA + P + K) + late
    P += [WAITTAG(vm=["W0", "XA0", "XB0"]), BAR()]
    P += stamp()

    PROD = []
    A = PROD.append
    for tap in range(3):
        for hf in range(2):
            A(DSR("ds_read_b64_tr_b16", R("v", 200 + 4 * tap + 2 * hf, 2), "v24" if tap < 2 else "v25", (2048 * gr["PR"].slot + 1024 * tap if tap < 2 else 0) + 128 * hf))
    A(V("v_lshlrev_b32", "v238", 16, "v238")); A(V("v_lshlrev_b32", "v239", 16, "v239"))
    PROD += scale_calc("v238", "v239", None)
    A(V("v_mul_f32", "v238", f2u(-LOG2E / 2), "v238"))
    for j in range(4):
        for tap in range(3):
            A(V("v_lshlrev_b32", f"v{224+2*tap}", 16, f"v{200+4*tap+j}")); A(V("v_and_b32", f"v{225+2*tap}", sMASK, f"v{200+4*tap+j}"))
        PROD += prod_pair(("v224", "v225"), ("v226", "v227"), ("v228", "v229"), "v238", f"v{212+j}", f"v{216+j}", f"v{220+j}", ("v230", "v231"))
    PROD += prod_store(SGS, 212, tag="PST")
    TABL = [GLD("global_load_dword", f"v{16+i}", "v26", f"s[{68+2*i}:{69+2*i}]", tag="TL") for i in range(4)]
    TABC = []
    A = TABC.append
    for e in range(2):
        for i in range(4):
            A(V("v_lshlrev_b32", f"v{232+2*i}", 16, f"v{16+i}") if e == 0 else V("v_and_b32", f"v{233+2*i}", sMASK, f"v{16+i}"))
    for e in range(2):
        mean, var, g, b = (f"v{232+2*i+e}" for i in range(4))
        TABC += scale_calc(var, g, None)
        A(V("v_fma_f32", b, "-" + mean, var, b))
        A(V("v_mul_f32", var, f2u(-LOG2E / 2), var)); A(V("v_mul_f32", b, f2u(-LOG2E / 2), b))
    A(DSW("ds_write_b64", "v27", "v[234:235]")); A(DSW("ds_write_b64", "v27", "v[238:239]", 2048, tag="TAB"))

    NM = 72 * NSTEP
    G0 = -(2 * LA + 1)
    gaps = {g: Gap() for g in range(G0, NM)}
    mf = []
    for s in range(NSTEP):
        ph = phase(s)
        for f in range(36):
            half, n = divmod(f, 18)
            for z in range(2):
                b = z ^ (f & 1)
                j = 2 * n + b
                wa = R("a", Wf(36 * s + f), 4)
                if ph < 3: xb = R("v", quads[s][2 * half + b], 4)
                if ph == 1: d = Qt(j); cc = 0 if (s == 0 and half == 0) else d
                elif ph == 2:
                    d = Pt(j) if half == 0 else Qt(j)
                    cc = Qt(j) if (s == 9 and half == 0 and j < 16) else d
                else:
                    xb = Es(f >> 1, b)
                    d = R("v", Rq(s - 27, usel(f), b), 4)
                    cc = R("v", Rq(s - 27, f, 1 - f), 4) if f < 2 else d
                mf.append(MFMA(d, wa, xb, cc))
    for F in range(36 * NSTEP):
        for k, r in enumerate(w_reads(F)):
            gaps[2 * (F - LA) - 1 + k].mem.append(r)
    earlies = []
    isvm = lambda g: any(m.kind in ("dma", "vld", "vst") for m in gaps[g].mem)
    cur = [None]
    sof = {}
    def place(dl, s, pos):
        assert len(pos) >= len(dl), (s, len(dl))
        for it, e in zip(dl, pos):
            g = ev(s, e)
            resolve(it, g)
            assert not isvm(g)
            gaps[g].mem.insert(0, it[2])
            if cur[0] is None or cur[0][0] != it[1]:
                cur[0] = (it[1], m0set(it[1]))
                gaps[g - 1 if any(m.kind == "dma" for m in gaps[g - 2].mem) else g - 2].pre.append(cur[0][1])
            expect[id(it[2])] = {"m0": cur[0][1]}
            for x in it[0]:
                for r in x.wr: sof[r] = x
            for r in it[2].rd & set(sof): expect[id(it[2])][r] = sof[r]
            earlies.append((g, it[0]))
    barrier, waits = {}, {}
    pos = c["pos"]
    pos15 = (1, 3, 5, 8, 10, 12, 15, 17, 19, 22, 24, 27, 29, 32, 34)
    for s in range(NSTEP):
        W = w_dmas(s + 2) if s + 2 < NSTEP else []
        if s > 0: barrier[g0(s)] = ([f"W{s}"], [])
        if s == 0: place(X("A2") + W + X("B2", "A3"), s, tuple(range(7, 36, 2)))
        elif s == 5: place(W + X("B7", "A8", "AE0"), s, pos15)
        elif s == 6: place(W + X("B8", "AO0"), s, pos)
        elif s == 7: place(W[:8] + X("BE0", "BO0") + W[8:], s, pos)
        elif s == 8: place(W + X("AE1", "AO1"), s, pos)
        elif 9 <= s <= 23 and s % 2 == 1: place(W[:4] + X(f"BE{(s-7)//2}", f"BO{(s-7)//2}") + W[4:], s, pos)
        elif 9 <= s <= 23: place(X(f"AE{(s-6)//2}", f"AO{(s-6)//2}") + W, s, pos)
        elif s > 23: place(W, s, c["pos9"])
        else: place(W + X(f"B{s+2}", f"A{s+3}"), s, pos)
        if s == 0 and c["pf_w"]:
            pf = pfw("v253", 192, 27)
            for k, it in enumerate(pf[:4]): gaps[1 + 2 * k].pre.append(it)
            gaps[9].valu.append(pf[4]); gaps[11].valu.append(pf[5]); gaps[ev(0, 12)].mem.insert(0, pf[6])
        if s == 0:
            for it, e in zip(TABL, (18, 20, 22, 24)): gaps[ev(s, e)].mem.insert(0, it)
        if s == 3: barrier[g0(s)][1].append("TAB")
        if s == c["sigwin"]:
            barrier[g0(s)][0].append("PST")
            if not c["nosignal"]:
                gaps[ev(s, 4)].mem.insert(0, I(f"buffer_atomic_add {vONE}, {vAOFF}, {SD}, 0 offen sc1", "vst", regs(vONE) + regs(vAOFF) + regs(SD), cost=8))
        if s == c["pollwin"]:
            gaps[ev(s, 25)].mem.insert(0, BLD("buffer_load_dword", vPOLL, vPOLL, SD, 0, flags="sc1", tag="POLL"))
        if s == 7:
            barrier[g0(s)][0].append("POLL")
            gaps[g0(s)].valu.append(V("v_readfirstlane_b32", sT[0], vPOLL))
            gaps[g0(s) + 1].pre += [S("s_cmp_lt_u32", sT[0], 81), RAW("s_cbranch_scc1 L_slow", "salu"), RAW("L_back:", "label")]
    for gn in gr.values():
        assert gn.slot is not None, gn.name
        g = gn.reads[0][0] - 1
        near = [x for x in barrier if 0 <= g - x <= 12]
        if near: barrier[near[0]][0].append("X" + gn.name)
        elif g >= 0: waits.setdefault(g, []).append("X" + gn.name)
        if gn.name != "PR":
            gn.rd = [gn.read(k) for k in range(2)]
            for k in range(2): gaps[gn.reads[k][0]].mem.append(gn.rd[k])
    for gn in gr.values():
        if gn.name[1] == "E":
            for k in range(2):
                g = next(g for g in range(gn.reads[k][0] + 2, gn.reads[k][0] + 10, 2) if not gaps[g].mem or (g < 72 * 9 - 2 * LA and gaps[g].used() <= 4))
                gaps[g].mem.append(DSR("ds_read_b128", Es(2 * gn.ch + k, gn.b), vXR[k], 2048 * gn.slot))
    for s in range(9):
        if phase(s) != 2:
            for i in range(72):
                half, b = i // 36, (i & 1) ^ ((i >> 1) & 1)
                w = gr["AB"[b] + str(s)].rd[half]
                expect[id(mf[72 * s + i])] = {r: w for r in w.wr}
                assert w.wr <= mf[72 * s + i].rd

    for g, early in earlies:
        for it in early:
            k = g - 2
            while k > g - 14 and (gaps[k].pre or isvm(k)): k -= 2
            if k <= g - 14: k = g - 2
            gaps[k].pre.insert(0, it)

    def fill(stream, lo, hi):
        cap = {g: max(0, 8 - gaps[g].used()) for g in range(lo, hi)}
        demand = sum(i.cost for i in stream)
        extra = max(0.0, (demand - sum(cap.values())) / (hi - lo))
        k, credit = 0, 0.0
        for g in range(lo, hi):
            credit += cap[g] + extra
            first = not gaps[g].valu
            fresh = True
            while k < len(stream):
                it = stream[k]
                assert it.kind != "salu"
                need = it.cost - 3.99 if extra > 0 else (min(it.cost, 4) if fresh else it.cost)
                if credit < need and g != hi - 1: break
                if it.kind in ("dsr", "dsw", "vst"):
                    if not first and g != hi - 1: break
                    (gaps[g].mem if first else gaps[g].valu).append(it)
                else:
                    gaps[g].valu.append(it); first = False
                credit -= it.cost; k += 1; fresh = False
            if extra == 0: credit = min(credit, 0.0)
        assert k == len(stream)
        fills.append((lo, hi, demand, sum(cap.values())))

    fills = []
    MEMK = ("dsr", "dsw", "vst")
    def sched(stream, lo, hi):
        n = len(stream)
        INF = 1e18
        best = {0: (0.0, None)}
        hist = []
        for g in range(lo, hi):
            gp = gaps[g]
            assert not gp.valu
            t0 = 8 + 4 * max(0, len(gp.pre) + (g & 1) - 1) + gp.used() + (16 if g in barrier else 0)
            nxt = {}
            for k, (cost, _) in best.items():
                t, front, lastw = t0, True, False
                j = k
                while True:
                    tot = cost + max(16, t) + c["eps"] * t * t
                    if tot < nxt.get(j, (INF,))[0]: nxt[j] = (tot, k)
                    if j == n or t > 110: break
                    it = stream[j]
                    if it.kind in MEMK:
                        t += it.cost + (0 if front else 8) + (12 if lastw and it.kind == "dsr" else 0)
                        lastw = it.kind == "dsw"; front = True
                    else:
                        t += 4 if it.kind == "pair" and t >= 28 and c["pk"] else it.cost
                        front = lastw = False
                    j += 1
            hist.append((nxt, t0)); best = nxt
        j, total = n, 0
        for g in range(hi - 1, lo - 1, -1):
            nxt, t = hist[g - lo]
            k = nxt[j][1]
            front, lastw = True, False
            for it in stream[k:j]:
                if it.kind in MEMK:
                    t += it.cost + (0 if front else 8) + (12 if lastw and it.kind == "dsr" else 0)
                    lastw = it.kind == "dsw"; front = True
                    gaps[g].valu.append(it)
                    continue
                front = lastw = False
                if it.kind != "pair": gaps[g].valu.append(it); t += it.cost
                elif t >= 28 and c["pk"]: gaps[g].valu.append(it.pk); t += 4
                else: gaps[g].valu += it.plain; t += 8
            total += max(16, t)
            j = k
        fills.append((lo, total))
    fill(PROD, c["prodr"][0], c["prodr"][1])
    fill(TABC, g0(2) + 2, g0(3) - 8)
    for s in range(9, 27):
        F0, F1, S0, S1 = quads[s]
        L = []
        t = [f"v{TMP+i}" for i in range(6)]
        for b, (E, O) in enumerate(((F0, S0), (F1, S1))):
            for j in range(4):
                e, o = f"v{E+j}", f"v{O+j}"
                n0 = len(L)
                L += [V("v_lshlrev_b32", t[0], 16, e), V("v_and_b32", t[1], sMASK, e), V("v_lshlrev_b32", t[2], 16, o), V("v_and_b32", t[3], sMASK, o),
                      V("v_add_f32", t[4], t[0], t[2]), V("v_add_f32", t[5], t[1], t[3]), V("v_sub_f32", t[2], t[2], t[0]), V("v_sub_f32", t[3], t[3], t[1]),
                      V("v_cvt_pk_bf16_f32", e, t[4], t[5]), V("v_cvt_pk_bf16_f32", o, t[2], t[3])]
                nm = lambda p: gr["AB"[b] + p + str((s - 9) // 2)].rd[(s - 9) % 2]
                expect[id(L[n0])] = {e: nm("E")}; expect[id(L[n0 + 2])] = {o: nm("O")}
                for i in range(72):
                    if (i & 1) ^ ((i >> 1) & 1) == b:
                        expect.setdefault(id(mf[72 * s + i]), {})[e if i < 36 else o] = L[n0 + 8 + i // 36]
        fill(L, 72 * (s - 1) + (6 if s == 9 else 0), 72 * s)

    L = [I("", "fence")] + stamp()
    if c["vlate"]: L += visit(9, range(16, 16 + c["vlate"]))
    prd = lambda n: [DSR("ds_read_b128", R("v", PB + 8 * (n % 6), 4), vTAB, 64 * n), DSR("ds_read_b128", R("v", PB + 8 * (n % 6) + 4, 4), vTAB, 2048 + 64 * n)]
    for n in range(3): L += prd(n)
    dppm = "row_shr:1 row_mask:0xf bank_mask:0xf bound_ctrl:1"
    def bdpp(n):
        return [V("v_sub_f32_dpp", f"v{QB+8*n+r}", f"v{QB+8*n+r}", f"v{QB+8*n+r}", mod=dppm) for r in range(8)]
    L += bdpp(0)
    for n in range(18):
        if n + 3 < 18: L += prd(n + 3)
        if n + 1 < 18: L += bdpp(n + 1)
        pb = PB + 8 * (n % 6)
        for b in range(2):
            for r in (0, 2):
                q = R("v", QB + 8 * n + 4 * b + r, 2)
                L.append(V("v_pk_fma_f32", q, q, R("v", pb + r, 2), R("v", pb + 4 + r, 2)))
        if n >= 8:
            for r in range(8): L.append(V("v_accvgpr_write_b32", f"a{144+8*(n-8)+r}", f"v{QB+8*n+r}"))
    L += stamp()
    gaps[72 * 9 - 1].post = L
    gaps[72 * 27 - 1].post = stamp()

    for g in c["at"]: gaps[g].post = stamp(True) + gaps[g].post

    pool = [44]
    first = [0, 4, 8, 12]
    take = lambda: first.pop(0) if first else pool.pop(0)
    give = lambda *q: pool.extend(x for x in q if x >= 32)
    flat8 = lambda qs: [f"v{q+r}" for q in qs for r in range(4)]
    prs = lambda qs: [q + r for q in qs for r in (0, 2)]
    def pop(op, d, a, b, neg=False):
        pk = V({"add": "v_pk_add_f32", "mul": "v_pk_mul_f32"}[op], R("v", d, 2), R("v", a, 2), R("v", b, 2), mod="neg_lo:[0,1] neg_hi:[0,1]" if neg else "")
        return Pair(pk, [V("v_sub_f32" if neg else f"v_{op}_f32", f"v{d+i}", f"v{a+i}", f"v{b+i}") for i in range(2)])
    pend = []
    nsub = [0]
    def silu(zq, b, m, par):
        L = []
        eq = [take(), take()]
        so = 1024 * (nsub[0] % 4)
        nsub[0] += 1
        z, e = flat8(zq), flat8(eq)
        L += [V("v_exp_f32", e[i], z[i]) for i in range(8)]
        for st, dq in pend: L.insert(c["stpos"], st); give(dq)
        pend.clear()
        L += [Pair(V("v_pk_fma_f32", R("v", x, 2), R("v", x, 2), sC2, sC2), [V("v_fma_f32", f"v{x+i}", f"v{x+i}", sC, sC) for i in range(2)]) for x in prs(eq)]
        L += [V("v_rcp_f32", x, x) for x in e]
        L += [pop("mul", x, x, y) for x, y in zip(prs(zq), prs(eq))]
        st = lambda q: BST("buffer_store_dwordx4", R("v", q, 4), vST, SO, sOB[b], par * ROW + 64 * m, flags=c["stflags"], cost=c["stc"])
        if c["out"] == "lds":
            L += [V("v_cvt_pk_bf16_f32", e[i], z[2 * i], z[2 * i + 1]) for i in range(4)]
            L += [DSW("ds_write_b64", vS0, R("v", eq[0], 2), so), DSW("ds_write_b64", vS1, R("v", eq[0] + 2, 2), so), DSR("ds_read_b128", R("v", zq[0], 4), vSR, so)]
            pend.append((st(zq[0]), zq[0])); give(zq[1], eq[1], eq[0])
        else:
            L += [V("v_cvt_pk_bf16_f32", e[i], z[2 * i], z[2 * i + 1]) for i in (0, 2, 1, 3)]
            sw = [V("v_permlane16_swap_b32", e[0], e[2]), V("v_permlane16_swap_b32", e[1], e[3])]
            L.append(sw[0])
            pend.append((st(eq[0]), eq[0])); pend.append((sw[1], 0)); give(zq[0], zq[1], eq[1])
        return L
    qq = lambda m, b: [QB + 4 * (4 * m + b), QB + 4 * (4 * m + 2 + b)]
    def even_rows(m, b):
        js = (4 * m + b, 4 * m + 2 + b)
        L = []
        if m < 4: pq = [PB + 4 * j for j in js]
        else:
            pq = [take(), take()]
            L += [V("v_accvgpr_read_b32", f"v{pq[u]+r}", f"a{144+4*(js[u]-16)+r}") for u in range(2) for r in range(4)]
        zq = [take(), take()]
        L += [pop("add", z, p, q) for z, p, q in zip(prs(zq), prs(pq), prs(qq(m, b)))]
        L += [pop("add", q, p, q, True) for p, q in zip(prs(pq), prs(qq(m, b)))]
        give(*pq)
        return L + silu(zq, b, m, 0)
    dppl = "row_shl:1 row_mask:0xf bank_mask:0xf bound_ctrl:1"
    def fold(m, b):
        rq = [Rq(m, 0, b), Rq(m, 1, b)]
        L = [V("v_sub_f32_dpp", r, r, r, mod=dppl) for r in flat8(rq[::-1] if c["chain"] else rq)]
        return L + [pop("add", x, x, y) for x, y in zip(prs(qq(m, b)), prs(rq))]
    r_rd = lambda m: [DSR("ds_read_b128", R("v", Rq(m, u, 1 - u), 4), vTAB, 2048 + 64 * (2 * m + u)) for u in range(2)]
    r_mul = lambda m: [V("v_mul_f32", r, vTF, r) for r in flat8([Rq(m, 0, 1), Rq(m, 1, 0)])]
    fill(r_rd(0) + [V("v_bfe_u32", vTF, vWLO, 4, 4), V("v_subrev_u32", vTF, 16, vTF), V("v_cvt_f32_i32", vTF, vTF), V("v_add_f32", vTF, vTF, vTF)], 72 * 26 + 4, 72 * 26 + 24)
    fill(r_mul(0), 72 * 26 + 24, 72 * 26 + 48)
    todo0 = [(m, b) for m in range(9) for b in range(2)]
    for m in range(9):
        n0 = c["ny0"][m]
        L = even_rows(*todo0.pop(0))
        if m == 0:
            L += even_rows(*todo0.pop(0)) + even_rows(*todo0.pop(0)) + r_rd(1)
            for _ in range(n0 - 4): L += even_rows(*todo0.pop(0))
            L2 = even_rows(*todo0.pop(0))
            L += L2[:8] + r_mul(1) + L2[8:]
        else:
            assert (m - 1, 1) not in todo0
            L += fold(m - 1, 0) + fold(m - 1, 1) + (r_rd(m + 1) if m < 8 else [])
            L += silu(qq(m - 1, 0), 0, m - 1, 1) + (r_mul(m + 1) if m < 8 else []) + silu(qq(m - 1, 1), 1, m - 1, 1)
            for _ in range(n0 - 1): L += even_rows(*todo0.pop(0))
        sched(L, 72 * (27 + m) + (2 if m == 0 else 0), min(72 * (28 + m), NM - 1))
    assert not todo0

    T = [I("", "fence")] + stamp()
    T += fold(8, 1) + silu(qq(8, 1), 1, 8, 1) + fold(8, 0) + silu(qq(8, 0), 0, 8, 1) + [x[0] for x in pend[::-1]]
    T = [i.pk if i.kind == "pair" else i for i in T]
    if c["stamps"]:
        T += stamp()
        T.append(I("", "drain"))
        T += stamp()
        T.append(RAW("s_waitcnt lgkmcnt(0)", "wait"))
        if c["diag"]:
            a, b, mult = c["diag"]
            T += [S("s_sub_u32", "s3", f"s{sRT[b]}", f"s{sRT[a]}"), S("s_mul_i32", "s3", "s3", mult), S("s_min_u32", "s3", "s3", 20000),
                  RAW("L_diag:", "label"), RAW("s_memrealtime s[4:5]", "salu"), RAW("s_waitcnt lgkmcnt(0)", "wait"),
                  S("s_sub_u32", "s4", "s4", f"s{sRT[7]}"), S("s_cmp_lt_u32", "s4", "s3"), RAW("s_cbranch_scc1 L_diag", "salu")]
        for k in range(8): T.append(V("v_mov_b32", f"v{k}", f"s{sSTAMP+2*k}"))
        for k in range(8): T.append(V("v_mov_b32", f"v{8+k}", f"s{sRT[k]}"))
        T += [S("s_lshl_b32", sT[0], "s2", 8), S("s_lshl_b32", sT[1], sWAVE, 6), S("s_add_u32", sT[0], sT[0], sT[1]), S("s_add_u32", sT[0], sT[0], 1 << 22),
              S("s_mov_b32", "s18", 1 << 23), V("v_mov_b32", "v16", 0), RAW("s_mov_b64 exec, 1", "salu")]
        for k in range(4): T.append(BST("buffer_store_dwordx4", R("v", 4 * k, 4), "v16", SG, sT[0], 16 * k))

    prog = list(P)
    for g in range(G0, NM):
        if g >= 0: prog.append(mf[g])
        gp = gaps[g]
        if c["ablr"][0] * 72 <= g < c["ablr"][1] * 72:
            drop = lambda i: (("v" in c["abl"] and i.kind in VALUK + ("dsw", "vst")) or ("r" in c["abl"] and i.kind == "dsr" and "a" in i.txt.split()[1])
                              or ("h" in c["abl"] and i.kind == "dsr" and "a" in i.txt.split()[1] and (g >> 1) & 1)
                              or ("d" in c["abl"] and i.kind == "dma") or ("x" in c["abl"] and i.kind == "dma" and i.tag[0] == "X")
                              or ("w" in c["abl"] and i.kind == "dma" and i.tag[0] == "W") or ("s" in c["abl"] and i.kind == "vst"))
            gp.mem = [i for i in gp.mem if not drop(i)]; gp.valu = [i for i in gp.valu if not drop(i)]
            if "n" in c["abl"] and g in barrier: barrier[g] = ([], [])
            if "b" in c["abl"] and g in barrier:
                prog.append(WAITPT(*barrier[g])); prog += gp.pre + gp.mem + gp.valu + gp.post
                continue
        if g in barrier:
            prog += [WAITPT(*barrier[g]), BAR()]
        elif g % 2 == 1 and g >= -1:
            prog.append(WAITPT(vm=waits.get(g, [])))
        prog += gp.pre + gp.mem + gp.valu + gp.post
    prog += T
    last = {}
    for it in prog:
        if id(it) in expect and not c["abl"]:
            for r, w in expect[id(it)].items(): assert last[r] is w, (it.txt, r, last[r].txt, w.txt)
        for r in it.wr: last[r] = it
    stats = {"fills": fills[:4] + fills[-9:]}
    prog = pad_hazards(insert_waits(prog, stats), stats)

    if c["pf2"]:
        size = lambda i: 0 if i.kind == "label" else (4 if i.kind in ("wait", "nop", "bar", "trans") else 8 if i.kind != "valu" else 6)
        total = sum(size(i) for i in prog)
        out, off, page = [], 0, 2
        for k, it in enumerate(prog):
            out.append(it); off += size(it)
            if it.kind == "mfma" and prog[k + 1].kind not in ("salu", "wait") and off >= page * 4096 - c["pfd"] - 4096 and page <= 17:
                if "a" in c["pf2"]: out.append(RAW(f"s_load_dword s76, s[0:1], {page * 4096}", "salu"))
                if "b" in c["pf2"] and page < 17: out.append(RAW(f"s_load_dword s77, s[78:79], {page * 4096}", "salu"))
                page += 1
        prog = out

    Z = []
    A = Z.append
    A(RAW("L_slow:", "label"))
    A(S("s_mov_b32", sT[4], c["spin"]))
    A(RAW("L_spin:", "label"))
    A(V("v_lshlrev_b32", vPOLL, 7, sH))
    A(BLD("buffer_load_dword", vPOLL, vPOLL, SD, 0, flags="sc1"))
    A(I("", "drain"))
    A(V("v_readfirstlane_b32", sT[0], vPOLL))
    A(S("s_sub_u32", sT[4], sT[4], 1))
    A(S("s_cmp_ge_u32", sT[0], 81)); A(RAW("s_cbranch_scc1 L_back", "salu"))
    A(S("s_cmp_lg_u32", sT[4], 0)); A(RAW("s_cbranch_scc1 L_spin", "salu"))
    A(S("s_mov_b32", sPN, 0))
    A(V("v_lshrrev_b32", "v238", 4, vWLO)); A(V("v_and_b32", "v239", 15, "v238")); A(V("v_lshlrev_b32", "v239", 1, "v239"))
    A(V("v_lshrrev_b32", "v238", 4, "v238")); A(V("v_mul_u32_u24", "v238", 8 * ROW, "v238")); A(V("v_add_u32", "v238", "v238", "v239"))
    A(RAW("L_fn:", "label"))
    A(S("s_mov_b32", sPK, 0))
    A(RAW("L_fk:", "label"))
    Z += prod_addr()
    A(V("v_add_u32", "v255", sT[2], "v239"))
    A(GLD("global_load_ushort", "v253", "v255", "s[70:71]")); A(GLD("global_load_ushort", "v254", "v255", "s[72:73]"))
    for tap in range(3):
        for j in range(8):
            A(BLD("buffer_load_ushort", f"v{200+8*tap+j}", "v238", SW, sPSRC))
            A(S("s_add_u32", sPSRC, sPSRC, ROW if j < 7 else TAP - 7 * ROW))
    A(S("s_add_u32", sPSRC, sPDST, SLOT // 2))
    A(I("", "drain"))
    for i in list(range(200, 224)) + [253, 254]: A(V("v_lshlrev_b32", f"v{i}", 16, f"v{i}"))
    Z += scale_calc("v253", "v254", None)
    A(V("v_mul_f32", "v253", f2u(-LOG2E / 2), "v253"))
    for j in range(4):
        pr = lambda tap: (f"v{200+8*tap+2*j}", f"v{201+8*tap+2*j}")
        Z += prod_pair(pr(0), pr(1), pr(2), "v253", f"v{224+j}", f"v{228+j}", f"v{232+j}", ("v236", "v237"))
    Z += prod_store(SG, 224)
    A(I("", "drain"))
    A(S("s_add_u32", sPK, sPK, 1)); A(S("s_cmp_lt_u32", sPK, 18)); A(RAW("s_cbranch_scc1 L_fk", "salu"))
    A(S("s_add_u32", sPN, sPN, 1)); A(S("s_cmp_lt_u32", sPN, 18)); A(RAW("s_cbranch_scc1 L_fn", "salu"))
    A(RAW("s_branch L_back", "salu"))
    Z = pad_hazards(insert_waits(Z))

    head = open("standalone__batchnorm__sampling.s.ref").read().split("; Override")[0]
    def text(prog, extra=()):
        o = [head + "; @launch grid=(256,1,1) block=(256,1,1) lds=163840", '.amdgcn_target "amdgcn-amd-amdhsa--gfx950"', ".text", f".globl {NAME}"]
        o += [".p2align 12"] if c["align"] else []
        o += [".p2align 8", f".type {NAME},@function", f"{NAME}:", "s_cmp_lt_u32 s2, 256", "s_cbranch_scc1 L_go", "s_endpgm", "L_go:"]
        o += [i.txt for i in prog]
        o += ["s_endpgm"] + [i.txt for i in Z] + ["L_codeend:"] + list(extra) + ["s_endpgm"]
        o += ['.section .rodata,"a"', ".p2align 6", f".amdhsa_kernel {NAME}", "  .amdhsa_next_free_vgpr 512", "  .amdhsa_next_free_sgpr 102",
              "  .amdhsa_accum_offset 256", "  .amdhsa_group_segment_fixed_size 0", "  .amdhsa_kernarg_size 72", "  .amdhsa_user_sgpr_count 2",
              "  .amdhsa_user_sgpr_kernarg_segment_ptr 1", "  .amdhsa_system_sgpr_workgroup_id_x 1", ".end_amdhsa_kernel", ""]
        return "\n".join(o)
    if vret:
        sz = iter(sizes(text(prog, [f"L_pg{p}:" for p in vret]))[3:])
        size = [0 if i.kind == "label" else next(sz) for i in prog]
        out, off, todo = [], c["kofs"] + 16, sorted(vret)
        for k, it in enumerate(prog):
            if todo and off >= 4096 * todo[0]:
                good = prog[k - 1].kind == "mfma" and it.kind not in ("salu", "wait", "bar")
                o2, later = off, False
                for j in range(k, k + 16):
                    o2 += size[j]
                    if o2 > 4096 * todo[0] + 28: break
                    if prog[j].kind == "mfma" and prog[j + 1].kind not in ("salu", "wait", "bar"): later = True
                if good or not later:
                    p = todo.pop(0)
                    out += [RAW(f"L_pg{p}:", "label"), RAW(f"s_cbranch_vccnz {vret[p]}", "salu")]
                    off += 4
            out.append(it); off += size[k]
        for p in todo: out += [RAW(f"L_pg{p}:", "label"), RAW(f"s_cbranch_vccnz {vret[p]}", "salu")]
        prog = out
        stats["end"] = hex(off)
    return text(prog), stats

def sizes(txt):
    import subprocess, tempfile, re, os
    d = tempfile.mkdtemp()
    open(d + "/a.s", "w").write(txt)
    subprocess.run(["clang", "-target", "amdgcn-amd-amdhsa", "-mcpu=gfx950", "-c", d + "/a.s", "-o", d + "/a.o"], check=True)
    dis = subprocess.run(["llvm-objdump", "-d", d + "/a.o"], capture_output=True, text=True).stdout
    return [4 * len(m.group(1).split()) for m in re.finditer(r"// [0-9A-F]{12}: ((?:[0-9A-F]{8} ?)+)", dis)]

if __name__ == "__main__":
    out = sys.argv[1]
    kw = {}
    for a in sys.argv[2:]:
        k, v = a.split("=", 1)
        kw[k] = eval(v)
    txt, stats = gen(**kw)
    open(out, "w").write(txt)
    nl = stats.pop("noplist", [])
    print(out, len(txt), "bytes", txt.count("\n"), "lines", stats)
    for x in nl:
        if x[0] > 450: print("  nop", x)
```

```python
import sys, struct
from asmlib import *

def f2u(x):
    return "0x%08x" % struct.unpack("<I", struct.pack("<f", x))[0]

NAME = "standalone__batchnorm__sampling_kernel"
LOG2E = 1.4426950408889634
ROW = 1152
BATCH = 36864
TAP = 663552
SLOT = 36864
GHALF = 27 * SLOT
XLDS = 3 * SLOT
STG = XLDS + 4 * 12288
NSTEP = 36

SX, SW, SG, SGS, SO, SD = "s[8:11]", "s[12:15]", "s[16:19]", "s[20:23]", "s[24:27]", "s[28:31]"
sWAVE, sH, sRB, sLW, sWB, sGB, sXL = "s40", "s41", "s42", "s43", "s46", "s47", "s48"
sXB = [["s44", "s45"], ["s63", "s83"]]
sSTG = "s82"
sOB = ["s49", "s50"]
sSP1, sGA, sGBb, sGC = "s51", "s52", "s53", "s54"
sMASK = "s55"
sC2, sC = "s[56:57]", "s56"
sPN, sPK, sPSRC, sPDST, sPDST2 = "s58", "s59", "s60", "s61", "s62"
sT = ["s3", "s4", "s5", "s6", "s7"]
sSTAMP = 84
sRT = [100, 32, 34, 36, 38, 64, 66, 80]
vWLO, vWHI, vXDMA, vST, vTAB = "v32", "v33", "v36", "v37", "v38"
vXR = ["v34", "v35"]
TMP = 42
vPOLL = "v252"
QB, PB = 48, 192
vW1, vTR, vTF, vAOFF, vONE = "v192", 193, "v36", "v198", "v199"

def Qt(j): return R("v", QB + 4 * j, 4)
def Pt(j): return R("v", PB + 4 * j, 4) if j < 16 else R("a", 144 + 4 * (j - 16), 4)
def Es(kk, b): return R("a", 8 * kk + 4 * b, 4)
def Rq(m, u, b): return (0 if m & 1 else 16) + 8 * u + 4 * b
def Wf(F): return 224 + 4 * (F % 8)
def phase(s): return 1 if s < 9 else (2 if s < 27 else 3)

DEF = dict(LA=6, stamps=False, nosignal=False, spin=4000, pos=(1, 3, 6, 8, 11, 13, 16, 18, 21, 24, 27, 30, 33), swap=True, prodr=(12, 110),
           gflags="sc1", stflags="sc1", rt=False, diag=None, abl="", ablr=(0, 0), pf_w=False, pf_code=True, pollwin=5, sigwin=3, xflags="", at=(), pf2="b", pfd=0, visit=(1, 2, 3, 4), vlate=0, pf1=0, align=True, kofs=0x300, chain=True, pos11=(1, 4, 7, 10, 13, 16, 19, 22, 25, 29, 33), t0a=(4, 4), t0b=(5, 34), elead=4, brel=6, pk=True, eps=0.002, stc=20, stpos=4, pos9=(1, 5, 9, 13, 17, 21, 25, 29, 33), ny0=(4, 2, 2, 2, 2, 2, 2, 1, 1))

class Gap:
    def __init__(self):
        self.pre, self.mem, self.valu, self.post = [], [], [], []
    def used(self):
        return sum(i.cost for i in self.mem + self.valu)

def scale_calc(var, g, t):
    def rnd(r): return [V("v_cvt_pk_bf16_f32", r, r, r), V("v_and_b32", r, sMASK, r)]
    L = [V("v_add_f32", var, f2u(1e-5), var)] + rnd(var)
    L += [V("v_sqrt_f32", var, var)] + rnd(var)
    L += [V("v_rcp_f32", var, var)] + rnd(var)
    L += [V("v_mul_f32", var, g, var)] + rnd(var)
    return L

def prod_pair(a, b, c, sh, o1, o2, o3, t):
    L = []
    for e in range(2):
        L.append(V("v_add_f32", a[e], a[e], c[e]))
    for e in range(2):
        L.append(V("v_mul_f32", a[e], a[e], sh))
    for e in range(2):
        L.append(V("v_mul_f32", c[e], c[e], sh))
    for e in range(2):
        L.append(V("v_fma_f32", t[e], b[e], sh, a[e]))
    for e in range(2):
        L.append(V("v_fma_f32", a[e], "-" + b[e], sh, a[e]))
    for e in range(2):
        L.append(V("v_add_f32", c[e], c[e], c[e]))
    L.append(V("v_cvt_pk_bf16_f32", o1, t[0], t[1]))
    L.append(V("v_cvt_pk_bf16_f32", o2, a[0], a[1]))
    L.append(V("v_cvt_pk_bf16_f32", o3, c[0], c[1]))
    return L

def prod_addr():
    L = [S("s_mul_i32", sPSRC, sPK, 32 * ROW), S("s_lshl_b32", sT[0], sPN, 5), S("s_add_u32", sPSRC, sPSRC, sT[0]),
         S("s_mul_i32", sT[1], sH, 576), S("s_add_u32", sPSRC, sPSRC, sT[1]), S("s_add_u32", sT[2], sT[0], sT[1]),
         S("s_mul_i32", sT[1], sH, GHALF), S("s_lshl_b32", sT[0], sPN, 10), S("s_add_u32", sT[1], sT[1], sT[0]),
         S("s_mul_i32", sPDST, sPK, SLOT), S("s_add_u32", sPDST, sPDST, sT[1]),
         S("s_lshr_b32", sPDST2, sPN, 1), S("s_mul_i32", sPDST2, sPDST2, SLOT - 2048), S("s_add_u32", sT[1], sT[1], sPDST2),
         S("s_lshl_b32", sPDST2, sPK, 11), S("s_add_u32", sPDST2, sPDST2, sT[1]), S("s_add_u32", sPDST2, sPDST2, 18 * SLOT)]
    return L

def prod_store(srd, o, tag=None):
    return [BST("buffer_store_dwordx4", R("v", o, 4), vWLO, srd, sPDST, flags="sc1"),
            BST("buffer_store_dwordx4", R("v", o + 4, 4), vWLO, srd, sPSRC, flags="sc1"),
            BST("buffer_store_dwordx4", R("v", o + 8, 4), vWLO, srd, sPDST2, flags="sc1", tag=tag)]

def gen(**kw):
    c = dict(DEF); c.update(kw)
    LA = c["LA"]
    nstamp = [0]
    def stamp(custom=False):
        if not c["stamps"] or (bool(c["at"]) != custom and nstamp[0] > 0): return []
        k = nstamp[0]; nstamp[0] += 1
        assert k < 8
        return [RAW(f"s_memtime s[{sSTAMP+2*k}:{sSTAMP+2*k+1}]", "salu"), RAW(f"s_memrealtime s[{sRT[k]}:{sRT[k]+1}]", "salu")]

    g0 = lambda s: 72 * s - 2 * LA - 1
    ev = lambda s, e: g0(s) + 1 + 2 * e
    def w_dmas(s):
        slot = (s % 3) * SLOT
        out = []
        if phase(s) == 1:
            for m in range(9):
                early = [S("s_add_u32", sSP1, sWB, 64 * s * ROW)] if m == 0 else []
                out.append([early, (sLW, slot + 960 * m), DMA(vW1, SW, sSP1, 64 * m, tag=f"W{s}")])
        else:
            sr = [sGA, sGBb, sGC]
            for i in range(9):
                early = [S("s_add_u32", sr[i // 4], sGB, (s - 9) * SLOT + 1024 * i)] if i % 4 == 0 else []
                out.append([early, (sLW, slot + 4096 * (i // 4)), DMA(vWLO, SG, sr[i // 4], 1024 * (i % 4), tag=f"W{s}", flags=c["gflags"])])
        return out
    def m0set(spec):
        return S("s_add_u32", "m0", spec[0], spec[1]) if spec[1] >= 0 else S("s_sub_u32", "m0", spec[0], -spec[1])

    quads = {s: [16, 20, 24, 28] if s & 1 else [0, 4, 8, 12] for s in range(9, 27)}
    tmajor = lambda s: s in (8, 9)
    split = lambda s, f: (f & 1, f >> 1) if tmajor(s) else divmod(f, 18)

    owner = {}
    class Gran:
        def __init__(self, name, b, par, ch, reads, span=None):
            self.name, self.b, self.par, self.ch, self.reads, self.slot = name, b, par, ch, reads, None
            self.span = span or (reads[0][0], reads[-1][0])
        def dmas(self):
            imm = self.par * ROW + 128 * self.ch
            L = [[[], (self, 1024 * i - imm), DMA(vXDMA, SX, sXB[self.b][i], imm, tag="X" + self.name, flags=c["xflags"])] for i in range(2)]
            for d in L: owner[id(d[2])] = self
            return L
        def read(self, dst, k):
            r = DSR("ds_read_b128", dst, vXR[k], 2048 * self.slot)
            owner[id(r)] = self
            return r
    gr = {}
    for s in range(9):
        ea, eb = ((0, 4), (2, 5)) if s == 0 else ((-4, -2), (0, 2)) if s == 8 else ((0, 7), (2, 9))
        gr[f"A{s}"] = Gran(f"A{s}", 0, 1, s, [(ev(s, ea[k]), Es(2 * s + k, 0), k) for k in range(2)])
        gr[f"B{s}"] = Gran(f"B{s}", 1, 1, s, [(ev(s, eb[k]), Es(2 * s + k, 1), k) for k in range(2)])
    for b in range(2):
        t0 = ev(*c["t0b" if b else "t0a"])
        gr["AB"[b] + "E0"] = Gran("AB"[b] + "E0", b, 0, 0, [], (t0, t0 + 24))
        for ch in range(1, 9):
            s = 9 + 2 * ch
            rd = [(ev(s - 1 + k, (8, 9)[b] if s + k == 11 else 2 * b), R("v", quads[s + k][b], 4), k) for k in range(2)]
            gr["AB"[b] + f"E{ch}"] = Gran("AB"[b] + f"E{ch}", b, 0, ch, rd, (min(rd[0][0], 72 * (s - 1)), 72 * s + 12))
    gr["PR"] = Gran("PR", 0, 0, 0, [], (c["prodr"][0], c["prodr"][0]))
    X = lambda *names: [d for n in names if n in gr for d in gr[n].dmas()]
    busy = [-10**6] * 6
    def alloc(g, when):
        if g.slot is None:
            free = [i for i in range(6) if busy[i] <= when]
            assert free, ("no x slot", g.name, when, busy)
            g.slot = free[0]
            busy[g.slot] = g.span[1] + 14
    def resolve(item, when):
        if isinstance(item[1][0], Gran):
            alloc(item[1][0], when)
            item[1] = (sXL, 2048 * item[1][0].slot + item[1][1])
    expect, kinds = {}, {}
    def flat(dl):
        L = []
        for it in dl:
            resolve(it, -1000)
            L += it[0] + [m0set(it[1]), it[2]]
        return L
    usel = lambda f: (f & 1) ^ ((f >> 1) & 1 if c["chain"] else 0)
    def w_reads(F):
        s, f = divmod(F, 36)
        slot = (s % 3) * SLOT
        if phase(s) == 1:
            kk, n = split(s, f)
            m, u = n >> 1, n & 1
            hi = 1 if s % 3 == 2 else 0
            off = (0 if hi else slot) + kk * 18432 + m * 1024
            return [DSR("ds_read_b64_tr_b16", R("a", Wf(F) + 2 * hf, 2), f"v{vTR + 2 * hi + u}", off + 256 * hf) for hf in range(2)]
        off = slot + 1024 * (18 * split(s, f)[0] + split(s, f)[1] if phase(s) == 2 else (f & ~1) + usel(f))
        return [DSR("ds_read_b128", R("a", Wf(F), 4), vWLO if off < 65536 else vWHI, off & 65535)]

    vret = {}
    def visit(r, pages):
        L = [RAW("s_mov_b64 vcc, 1", "salu")]
        for w, p in enumerate(pages):
            vret[p] = f"L_vr{r}"
            if w < 3: L += [S("s_cmp_eq_u32", sWAVE, w), RAW(f"s_cbranch_scc1 L_pg{p}", "salu")]
            else: L.append(RAW(f"s_branch L_pg{p}", "salu"))
        return L + [RAW(f"L_vr{r}:", "label"), RAW("s_mov_b64 vcc, 0", "salu")]
    def vround(pt):
        L = []
        for r, x in enumerate(c["visit"]):
            if x == pt: L += visit(r, [p for p in range(4 * r + 1, 4 * r + 5) if p <= 15])
        return L

    P = []
    A = P.append
    P += stamp()
    A(RAW("s_load_dwordx4 s[64:67], s[0:1], 0", "salu"))
    if c["pf_code"]:
        A(RAW("s_getpc_b64 s[4:5]", "salu", wr=["s4", "s5"]))
        A(RAW("L_pc:", "label"))
        A(S("s_lshr_b32", "s3", "s2", 3)); A(S("s_mul_i32", "s3", "s3", 20 * 128))
        A(V("v_min_u32", "v14", 19, "v0")); A(V("v_lshl_add_u32", "v14", "v14", 7, "s3"))
        A(V("v_min_u32", "v14", "L_codeend-L_pc-4", "v14"))
        A(GLD("global_load_dword", "v254", "v14", "s[4:5]"))
        if c["pf1"]:
            A(S("s_and_b32", "s4", "s4", "0xfffff000"))
            A(V("v_and_b32", "v14", 63, "v0")); A(V("v_min_u32", "v14", 15, "v14")); A(V("v_lshlrev_b32", "v14", 12, "v14"))
            A(V("v_lshrrev_b32", "v15", 6, "v0")); A(V("v_min_u32", "v15", c["pf1"] - 1, "v15")); A(V("v_lshl_add_u32", "v14", "v15", 7, "v14"))
            A(V("v_add_u32", "v14", 4096, "v14"))
            A(GLD("global_load_dword", "v253", "v14", "s[4:5]"))
    A(RAW("s_load_dwordx8 s[68:75], s[0:1], 16", "salu"))
    A(RAW("s_load_dwordx4 s[76:79], s[0:1], 48", "salu"))
    A(RAW("s_load_dwordx2 s[80:81], s[0:1], 64", "salu"))
    A(V("v_lshrrev_b32", "v1", 6, "v0"))
    A(V("v_and_b32", "v2", 63, "v0"))
    A(V("v_readfirstlane_b32", sWAVE, "v1"))
    A(S("s_bfe_u32", sH, "s2", "0x10003"))
    A(S("s_lshr_b32", sRB, "s2", 4)); A(S("s_and_b32", sT[0], "s2", 7)); A(S("s_lshl3_add_u32", sRB, sRB, sT[0]))
    A(V("v_lshrrev_b32", "v3", 2, "v2"))
    A(V("v_and_b32", "v4", 3, "v2"))
    A(V("v_lshrrev_b32", "v5", 4, "v2"))
    A(V("v_and_b32", "v6", 15, "v2"))
    A(S("s_lshl2_add_u32", sT[3], sRB, sWAVE))
    A(S("s_mul_i32", sT[4], sT[3], 2 * BATCH))
    A(S("s_mul_i32", sT[1], sH, BATCH if c["swap"] else 0))
    A(S("s_add_u32", sXB[0][0], sT[4], sT[1])); A(S("s_sub_u32", sXB[1][0], BATCH, sT[1])); A(S("s_add_u32", sXB[1][0], sXB[1][0], sT[4]))
    A(S("s_add_u32", sXB[0][1], sXB[0][0], 16 * ROW)); A(S("s_add_u32", sXB[1][1], sXB[1][0], 16 * ROW))
    A(S("s_mul_i32", sXL, sWAVE, 12288)); A(S("s_add_u32", sXL, sXL, XLDS))
    A(S("s_mul_i32", sLW, sWAVE, 9216))
    A(S("s_mul_i32", sT[0], sH, 576))
    A(S("s_mul_i32", sWB, sWAVE, 16 * ROW)); A(S("s_add_u32", sWB, sWB, sT[0]))
    A(S("s_add_u32", sOB[0], sXB[0][0], sT[0])); A(S("s_add_u32", sOB[1], sXB[1][0], sT[0]))
    A(V("v_lshrrev_b32", "v7", 3, "v2")); A(V("v_mul_u32_u24", vXDMA, 2 * ROW, "v7"))
    A(V("v_and_b32", "v7", 7, "v2")); A(V("v_lshlrev_b32", "v8", 1, "v5")); A(V("v_xor_b32", "v7", "v7", "v8")); A(V("v_lshl_add_u32", vXDMA, "v7", 4, vXDMA))
    A(V("v_and_b32", "v7", 2, "v5")); A(V("v_xor_b32", "v7", "v4", "v7"))
    A(V("v_mul_u32_u24", vW1, ROW, "v3")); A(V("v_lshl_add_u32", vW1, "v7", 4, vW1))
    A(S("s_min_u32", sT[4], sT[3], 323))
    A(S("s_mul_i32", sPK, sT[4], 3641)); A(S("s_lshr_b32", sPK, sPK, 16))
    A(S("s_mul_i32", sPN, sPK, 18)); A(S("s_sub_u32", sPN, sT[4], sPN))
    P += prod_addr()
    A(V("v_lshl_add_u32", "v8", "v6", 1, sT[2]))
    A(V("v_lshrrev_b32", "v9", 1, "v2")); A(V("v_mul_u32_u24", "v9", ROW, "v9"))
    A(V("v_and_b32", "v10", 1, "v2")); A(V("v_lshl_add_u32", "v9", "v10", 4, "v9"))
    A(S("s_lshl_b32", sSTG, sWAVE, 10)); A(S("s_add_u32", sSTG, sSTG, STG))
    def srd(base, lo, nrec):
        return [S("s_mov_b32", f"s{base}", f"s{lo}"), S("s_mov_b32", f"s{base+1}", f"s{lo+1}"),
                S("s_mov_b32", f"s{base+2}", nrec), S("s_mov_b32", f"s{base+3}", "0x20000")]
    def pfw(dst, row0, nl):
        return [S("s_lshr_b32", sT[0], "s2", 3), S("s_lshl2_add_u32", sT[0], sT[0], sWAVE), S("s_mul_i32", sT[0], sT[0], nl * 128), S("s_add_u32", sT[0], sT[0], row0 * ROW),
                V("v_lshlrev_b32", dst, 3, vWLO), V("v_min_u32", dst, (nl - 1) * 128, dst), BLD("buffer_load_dword", dst, dst, SW, sT[0])]
    A(V("v_lshlrev_b32", vWLO, 4, "v2"))
    A(RAW("s_waitcnt lgkmcnt(0)", "wait"))
    P += srd(8, 64, 1024 * BATCH) + srd(12, 66, 3 * TAP)
    if c["pf_w"]: P += pfw("v255", 64, 9)
    P += flat(X("A0", "B0")) + flat(w_dmas(0))
    P += [S("s_mov_b32", r, 0) for r in (sGA, sGBb, sGC)] if c["visit"] else []
    PA = P; P = []; A = P.append
    A(GLD("global_load_ushort", "v238", "v8", "s[70:71]")); A(GLD("global_load_ushort", "v239", "v8", "s[72:73]"))
    alloc(gr["PR"], -1000)
    for tap in range(3):
        A(m0set((sXL, 2048 * gr["PR"].slot + 1024 * tap) if tap < 2 else (sSTG, 0)))
        if tap: A(S("s_add_u32", sPSRC, sPSRC, TAP))
        A(DMA("v9", SW, sPSRC, tag="XPR"))
    A(S("s_add_u32", sPSRC, sPDST, SLOT // 2))
    w1 = w_dmas(1)
    late = vround(1) + flat(X("A1", "B1")) + vround(2) + flat(w1[:4]) + vround(3) + flat(w1[4:]) + vround(4)
    K = []
    A = K.append
    A(S("s_mov_b32", sMASK, "0xffff0000"))
    A(S("s_mov_b32", "s56", f2u(-LOG2E))); A(S("s_mov_b32", "s57", f2u(-LOG2E)))
    A(S("s_mul_i32", sGB, sH, GHALF)); A(S("s_add_u32", sGB, sGB, sLW))
    K += srd(16, 80, 2 * GHALF) + srd(20, 80, 2 * GHALF) + srd(24, 76, 1024 * BATCH) + srd(28, 78, 256)
    A(S("s_cmp_lt_u32", sT[3], 324)); A(S("s_cselect_b32", "s22", "s22", 0))
    A(V("v_add_u32", vWHI, 65536, vWLO))
    if c["pf2"]:
        A(RAW("s_getpc_b64 s[0:1]", "salu", wr=["s0", "s1"]))
        A(S("s_and_b32", "s0", "s0", "0xfffff000"))
        A(S("s_lshr_b32", sT[0], "s2", 3)); A(S("s_and_b32", sT[1], sWAVE, 1)); A(S("s_lshl1_add_u32", sT[0], sT[0], sT[1]))
        A(S("s_lshl_b32", sT[0], sT[0], 6)); A(S("s_add_u32", "s78", "s0", sT[0])); A(S("s_mov_b32", "s79", "s1"))
    A(V("v_and_b32", "v7", 6, "v6")); A(V("v_xor_b32", "v7", "v5", "v7")); A(V("v_lshlrev_b32", "v7", 4, "v7"))
    A(V("v_lshl_add_u32", "v7", "v6", 7, "v7")); A(V("v_add_u32", vXR[0], sXL, "v7")); A(V("v_xor_b32", vXR[1], 64, vXR[0]))
    A(V("v_bfrev_b32", "v7", "v5")); A(V("v_lshrrev_b32", "v7", 26, "v7")); A(V("v_mul_u32_u24", vST, 2 * ROW, "v6")); A(V("v_add_u32", vST, vST, "v7"))
    A(V("v_lshrrev_b32", "v20", 1, "v5")); A(V("v_and_b32", "v21", 1, "v5"))
    A(V("v_lshlrev_b32", vTAB, 4, "v5")); A(V("v_add_u32", vTAB, STG, vTAB))
    A(V("v_and_b32", "v22", 3, "v3"))
    A(V("v_lshl_add_u32", "v23", "v21", 3, "v22")); A(V("v_lshlrev_b32", "v23", 6, "v23"))
    A(V("v_mul_u32_u24", "v24", 9216, "v20")); A(V("v_add_u32", "v23", "v23", "v24"))
    A(V("v_lshrrev_b32", "v24", 1, "v4")); A(V("v_lshl_add_u32", "v24", "v21", 1, "v24")); A(V("v_lshl_add_u32", "v23", "v24", 4, "v23"))
    A(V("v_and_b32", "v24", 1, "v4")); A(V("v_lshl_add_u32", f"v{vTR}", "v24", 3, "v23"))
    A(V("v_xor_b32", f"v{vTR+1}", 32, f"v{vTR}"))
    A(V("v_add_u32", f"v{vTR+2}", 2 * SLOT, f"v{vTR}")); A(V("v_add_u32", f"v{vTR+3}", 2 * SLOT, f"v{vTR+1}"))
    A(S("s_lshl_b32", sT[0], sH, 7)); A(V("v_mov_b32", vPOLL, sT[0])); A(S("s_cmp_lt_u32", sRB, 81)); A(S("s_cselect_b32", sT[0], sT[0], 4096))
    A(V("v_lshl_add_u32", vAOFF, "v0", 8, sT[0])); A(V("v_mov_b32", vONE, 1))
    A(V("v_lshl_add_u32", "v24", "v5", 3, "v22")); A(V("v_lshlrev_b32", "v24", 5, "v24")); A(V("v_lshl_add_u32", "v24", "v4", 3, "v24"))
    A(V("v_add_u32", "v25", sSTG, "v24")); A(V("v_add_u32", "v24", sXL, "v24"))
    A(S("s_mul_i32", sT[0], sH, 576))
    A(V("v_lshl_add_u32", "v26", "v0", 2, sT[0])); A(V("v_min_u32", "v26", 1148, "v26"))
    A(V("v_lshlrev_b32", "v27", 3, "v0")); A(V("v_add_u32", "v27", STG, "v27"))
    P = (PA + K + vround(0) + P if 0 in c["visit"] else PA + P + K) + late
    P += [WAITTAG(vm=["W0", "XA0", "XB0"]), BAR()]
    P += stamp()

    PROD = []
    A = PROD.append
    for tap in range(3):
        for hf in range(2):
            A(DSR("ds_read_b64_tr_b16", R("v", 200 + 4 * tap + 2 * hf, 2), "v24" if tap < 2 else "v25", (2048 * gr["PR"].slot + 1024 * tap if tap < 2 else 0) + 128 * hf))
    A(V("v_lshlrev_b32", "v238", 16, "v238")); A(V("v_lshlrev_b32", "v239", 16, "v239"))
    PROD += scale_calc("v238", "v239", None)
    A(V("v_mul_f32", "v238", f2u(-LOG2E / 2), "v238"))
    for j in range(4):
        for tap in range(3):
            A(V("v_lshlrev_b32", f"v{224+2*tap}", 16, f"v{200+4*tap+j}")); A(V("v_and_b32", f"v{225+2*tap}", sMASK, f"v{200+4*tap+j}"))
        PROD += prod_pair(("v224", "v225"), ("v226", "v227"), ("v228", "v229"), "v238", f"v{212+j}", f"v{216+j}", f"v{220+j}", ("v230", "v231"))
    PROD += prod_store(SGS, 212, tag="PST")
    TABL = [GLD("global_load_dword", f"v{16+i}", "v26", f"s[{68+2*i}:{69+2*i}]", tag="TL") for i in range(4)]
    TABC = []
    A = TABC.append
    for e in range(2):
        for i in range(4):
            A(V("v_lshlrev_b32", f"v{232+2*i}", 16, f"v{16+i}") if e == 0 else V("v_and_b32", f"v{233+2*i}", sMASK, f"v{16+i}"))
    for e in range(2):
        mean, var, g, b = (f"v{232+2*i+e}" for i in range(4))
        TABC += scale_calc(var, g, None)
        A(V("v_fma_f32", b, "-" + mean, var, b))
        A(V("v_mul_f32", var, f2u(-LOG2E / 2), var)); A(V("v_mul_f32", b, f2u(-LOG2E / 2), b))
    A(DSW("ds_write_b64", "v27", "v[234:235]")); A(DSW("ds_write_b64", "v27", "v[238:239]", 2048, tag="TAB"))

    NM = 72 * NSTEP
    G0 = -(2 * LA + 1)
    gaps = {g: Gap() for g in range(G0, NM)}
    mf = []
    for s in range(NSTEP):
        ph = phase(s)
        for f in range(36):
            half, n = split(s, f)
            for z in range(2):
                b = z ^ (f & 1)
                j = 2 * n + b
                wa = R("a", Wf(36 * s + f), 4)
                if ph < 3: xb = Es(2 * s + half, b) if ph == 1 else R("v", quads[s][2 * half + b], 4)
                if ph == 1: d = Qt(j); cc = 0 if (s == 0 and half == 0) else d
                elif ph == 2:
                    d = Pt(j) if half == 0 else Qt(j)
                    cc = Qt(j) if (s == 9 and half == 0 and j < 16) else d
                else:
                    xb = Es(f >> 1, b)
                    d = R("v", Rq(s - 27, usel(f), b), 4)
                    cc = R("v", Rq(s - 27, f, 1 - f), 4) if f < 2 else d
                mf.append(MFMA(d, wa, xb, cc))
    for F in range(36 * NSTEP):
        for k, r in enumerate(w_reads(F)):
            gaps[2 * (F - LA) - 1 + k].mem.append(r)
    earlies = []
    isvm = lambda g: any(m.kind in ("dma", "vld", "vst") for m in gaps[g].mem)
    cur = [None]
    sof = {}
    def place(dl, s, pos):
        assert len(pos) >= len(dl), (s, len(dl))
        for it, e in zip(dl, pos):
            g = ev(s, e)
            resolve(it, g)
            assert not isvm(g)
            gaps[g].mem.insert(0, it[2])
            if cur[0] is None or cur[0][0] != it[1]:
                cur[0] = (it[1], m0set(it[1]))
                gaps[g - 1 if any(m.kind == "dma" for m in gaps[g - 2].mem) else g - 2].pre.append(cur[0][1])
            expect[id(it[2])] = {"m0": cur[0][1]}
            for x in it[0]:
                for r in x.wr: sof[r] = x
            for r in it[2].rd & set(sof): expect[id(it[2])][r] = sof[r]
            earlies.append((g, it[0]))
    barrier, waits = {}, {}
    pos = c["pos"]
    pos15 = (1, 3, 5, 8, 10, 12, 15, 17, 19, 22, 24, 27, 29, 32, 34)
    for s in range(NSTEP):
        W = w_dmas(s + 2) if s + 2 < NSTEP else []
        if s > 0: barrier[g0(s)] = ([f"W{s}"], [])
        if s == 0: place(X("A2") + W + X("B2", "A3"), s, tuple(range(7, 36, 2)))
        else:
            xs = X(f"B{s+2}", f"A{s+3}", *{1: ["AE0"], 4: ["BE0"]}.get(s, []))
            e = s - c["elead"]
            if e >= 2: xs += X("AB"[e & 1] + f"E{e // 2}")
            place(W + xs, s, {0: c["pos9"], 2: c["pos11"], 4: pos, 6: pos15}[len(xs)])
        if s == 0 and c["pf_w"]:
            pf = pfw("v253", 192, 27)
            for k, it in enumerate(pf[:4]): gaps[1 + 2 * k].pre.append(it)
            gaps[9].valu.append(pf[4]); gaps[11].valu.append(pf[5]); gaps[ev(0, 12)].mem.insert(0, pf[6])
        if s == 0:
            for it, e in zip(TABL, (18, 20, 22, 24)): gaps[ev(s, e)].mem.insert(0, it)
        if s == 3: barrier[g0(s)][1].append("TAB")
        if s == c["sigwin"]:
            barrier[g0(s)][0].append("PST")
            if not c["nosignal"]:
                gaps[ev(s, 4)].mem.insert(0, I(f"buffer_atomic_add {vONE}, {vAOFF}, {SD}, 0 offen sc1", "vst", regs(vONE) + regs(vAOFF) + regs(SD), cost=8))
        if s == c["pollwin"]:
            gaps[ev(s, 25)].mem.insert(0, BLD("buffer_load_dword", vPOLL, vPOLL, SD, 0, flags="sc1", tag="POLL"))
        if s == 7:
            barrier[g0(s)][0].append("POLL")
            gaps[g0(s)].valu.append(V("v_readfirstlane_b32", sT[0], vPOLL))
            gaps[g0(s) + 1].pre += [S("s_cmp_lt_u32", sT[0], 81), RAW("s_cbranch_scc1 L_slow", "salu"), RAW("L_back:", "label")]
    for gn in gr.values():
        assert gn.slot is not None, gn.name
        g = gn.span[0] - 1
        near = [x for x in barrier if 0 <= g - x <= 12]
        if near: barrier[near[0]][0].append("X" + gn.name)
        elif g >= 0: waits.setdefault(g, []).append("X" + gn.name)
        gn.rd = [gn.read(dst, k) for _, dst, k in gn.reads]
        for x, r in zip(gn.reads, gn.rd): gaps[x[0]].mem.append(r)
    bsel = lambda i: (i & 1) ^ ((i >> 1) & 1)
    for s in range(9):
        for i in range(72):
            w = gr["AB"[bsel(i)] + str(s)].rd[split(s, i >> 1)[0]]
            expect[id(mf[72 * s + i])] = {r: w for r in w.wr}
            assert w.wr <= mf[72 * s + i].rd

    for g, early in earlies:
        for it in early:
            k = g - 2
            while k > g - 14 and (gaps[k].pre or isvm(k)): k -= 2
            if k <= g - 14: k = g - 2
            gaps[k].pre.insert(0, it)

    def fill(stream, lo, hi):
        cap = {g: max(0, 8 - gaps[g].used()) for g in range(lo, hi)}
        demand = sum(i.cost for i in stream)
        extra = max(0.0, (demand - sum(cap.values())) / (hi - lo))
        k, credit = 0, 0.0
        for g in range(lo, hi):
            credit += cap[g] + extra
            first = not gaps[g].valu
            fresh = True
            while k < len(stream):
                it = stream[k]
                assert it.kind != "salu"
                need = it.cost - 3.99 if extra > 0 else (min(it.cost, 4) if fresh else it.cost)
                if credit < need and g != hi - 1: break
                if it.kind in ("dsr", "dsw", "vst"):
                    if not first and g != hi - 1: break
                    (gaps[g].mem if first else gaps[g].valu).append(it)
                else:
                    gaps[g].valu.append(it); first = False
                credit -= it.cost; k += 1; fresh = False
            if extra == 0: credit = min(credit, 0.0)
        assert k == len(stream)
        fills.append((lo, hi, demand, sum(cap.values())))

    fills = []
    MEMK = ("dsr", "dsw", "vst")
    def sched(stream, lo, hi, lim={}):
        n = len(stream)
        INF = 1e18
        best = {0: (0.0, None)}
        hist = []
        for g in range(lo, hi):
            gp = gaps[g]
            assert not gp.valu
            t0 = 8 + 4 * max(0, len(gp.pre) + (g & 1) - 1) + gp.used() + (16 if g in barrier else 0)
            nxt = {}
            for k, (cost, _) in best.items():
                t, front, lastw = t0, True, False
                j = k
                while True:
                    tot = cost + max(16, t) + c["eps"] * t * t
                    if tot < nxt.get(j, (INF,))[0] and (j == n or lim.get(id(stream[j]), (0, hi))[1] > g): nxt[j] = (tot, k)
                    if j == n or t > 110: break
                    it = stream[j]
                    if not lim.get(id(it), (0, hi))[0] <= g <= lim.get(id(it), (0, hi))[1]: break
                    if it.kind in MEMK:
                        t += it.cost + (0 if front else 8) + (12 if lastw and it.kind == "dsr" else 0)
                        lastw = it.kind == "dsw"; front = True
                    else:
                        t += 4 if it.kind == "pair" and t >= 28 and c["pk"] else it.cost
                        front = lastw = False
                    j += 1
            hist.append((nxt, t0)); best = nxt
        j, total = n, 0
        for g in range(hi - 1, lo - 1, -1):
            nxt, t = hist[g - lo]
            k = nxt[j][1]
            front, lastw = True, False
            for it in stream[k:j]:
                if it.kind in MEMK:
                    t += it.cost + (0 if front else 8) + (12 if lastw and it.kind == "dsr" else 0)
                    lastw = it.kind == "dsw"; front = True
                    gaps[g].valu.append(it)
                    continue
                front = lastw = False
                if it.kind != "pair": gaps[g].valu.append(it); t += it.cost
                elif t >= 28 and c["pk"]: gaps[g].valu.append(it.pk); t += 4
                else: gaps[g].valu += it.plain; t += 8
            total += max(16, t)
            j = k
        fills.append((lo, total))
    fill(PROD, c["prodr"][0], c["prodr"][1])
    fill(TABC, g0(2) + 2, g0(3) - 8)
    def unstash(s, b):
        kk = s - 9
        g = gr["AB"[b] + f"E{kk // 2}"]
        L = [V("v_accvgpr_read_b32", f"v{quads[s][2+b]+j}", f"a{8*kk+4*b+j}") for j in range(4)]
        for x in L: expect[id(x)] = {r: gr["AB"[b] + str(kk // 2)].rd[kk & 1] for r in x.rd}
        st = g.read(Es(kk, b), kk & 1)
        for m in range(27, 36):
            for i in range(4 * kk, 4 * kk + 4):
                if bsel(i) == b: expect.setdefault(id(mf[72 * m + i]), {}).update({r: st for r in st.wr})
        return L + [st]
    def transform(s, b):
        L = []
        t = [f"v{TMP+i}" for i in range(6)]
        for j in range(4):
            e, o = f"v{quads[s][b]+j}", f"v{quads[s][2+b]+j}"
            n0 = len(L)
            L += [V("v_lshlrev_b32", t[2], 16, o), V("v_and_b32", t[3], sMASK, o), V("v_lshlrev_b32", t[0], 16, e), V("v_and_b32", t[1], sMASK, e),
                  V("v_add_f32", t[4], t[0], t[2]), V("v_add_f32", t[5], t[1], t[3]), V("v_sub_f32", t[2], t[2], t[0]), V("v_sub_f32", t[3], t[3], t[1]),
                  V("v_cvt_pk_bf16_f32", e, t[4], t[5]), V("v_cvt_pk_bf16_f32", o, t[2], t[3])]
            expect[id(L[n0 + 2])] = {e: gr["AB"[b] + f"E{(s - 9) // 2}"].rd[(s - 9) % 2]}
            for i in range(72):
                if bsel(i) == b:
                    half = split(s, i >> 1)[0]
                    expect.setdefault(id(mf[72 * s + i]), {})[o if half else e] = L[n0 + 8 + half]
        return L
    for b in range(2):
        g = gr["AB"[b] + "E0"]
        g.rd = [g.read(R("v", quads[9 + k][b], 4), k) for k in range(2)]
        fill(g.rd + unstash(9, b) + unstash(10, b) + transform(9, b) + transform(10, b), g.span[0], 72 * 8 if b else gr["BE0"].span[0])
    for s in range(11, 27):
        fill(unstash(s, 1) + unstash(s, 0) + transform(s, 0) + transform(s, 1), 72 * (s - 1) + (4 if s == 11 else 1), 72 * s)

    dppm = "row_shr:1 row_mask:0xf bank_mask:0xf bound_ctrl:1"
    pset = lambda n: (240, 248)[n & 1] if n < 9 else 40
    prd = lambda n: [DSR("ds_read_b128", R("v", pset(n), 4), vTAB, 64 * n), DSR("ds_read_b128", R("v", pset(n) + 4, 4), vTAB, 2048 + 64 * n)]
    prd = [prd(n) for n in range(18)].__getitem__
    L, lim = list(prd(0)), {}
    for n in range(18):
        if n < 9: L += prd(n + 1)
        B = [V("v_sub_f32_dpp", f"v{QB+8*n+r}", f"v{QB+8*n+r}", f"v{QB+8*n+r}", mod=dppm) for r in (4, 5, 6, 7, 0, 1, 2, 3)]
        for b in (1, 0):
            for r in (0, 2):
                q, p = QB + 8 * n + 4 * b + r, pset(n) + r
                B.append(Pair(V("v_pk_fma_f32", R("v", q, 2), R("v", q, 2), R("v", p, 2), R("v", p + 4, 2)),
                              [V("v_fma_f32", f"v{q+i}", f"v{q+i}", f"v{p+i}", f"v{p+4+i}") for i in range(2)]))
        for x in B[:8]: expect[id(x)] = {r: next(m for m in mf[72 * 8 + 4 * n + 2:72 * 8 + 4 * n + 4] if r in m.wr) for r in x.rd}
        for x in B[8:]:
            for y in [x.pk] + x.plain: expect[id(y)] = {r: w for w in prd(n) for r in w.wr & y.rd}
        for m in mf[72 * 9 + 4 * n:72 * 9 + 4 * n + 4]: kinds[id(m)] = {r: "v_accvgpr_write" if r[0] == "a" else ("v_fma", "v_pk_fma") for r in m.srcc}
        if 9 <= n < 17: B += prd(n + 1)
        if n >= 8: B += [V("v_accvgpr_write_b32", f"a{144+8*(n-8)+r}", f"v{QB+8*n+r}") for r in (4, 5, 6, 7, 0, 1, 2, 3)]
        for x in B: lim[id(x)] = (72 * 8 + 4 * n + c["brel"], 72 * 9 + min(4 * n, 24 if n < 9 else 99) - 2)
        L += B
    sched(L, 72 * 8, 72 * 10, lim)
    keep = L
    gaps[72 * 8 - 1].post = stamp()
    gaps[72 * 10 - 1].post = stamp()
    if c["vlate"]: gaps[72 * 10 - 1].post += visit(9, range(16, 16 + c["vlate"]))
    gaps[72 * 27 - 1].post = stamp()

    for g in c["at"]: gaps[g].post = stamp(True) + gaps[g].post

    pool = [40, 44]
    first = [0, 4, 8, 12]
    take = lambda: first.pop(0) if first else pool.pop(0)
    give = lambda *q: pool.extend(x for x in q if x >= 32)
    flat8 = lambda qs: [f"v{q+r}" for q in qs for r in range(4)]
    prs = lambda qs: [q + r for q in qs for r in (0, 2)]
    def pop(op, d, a, b, neg=False):
        pk = V({"add": "v_pk_add_f32", "mul": "v_pk_mul_f32"}[op], R("v", d, 2), R("v", a, 2), R("v", b, 2), mod="neg_lo:[0,1] neg_hi:[0,1]" if neg else "")
        return Pair(pk, [V("v_sub_f32" if neg else f"v_{op}_f32", f"v{d+i}", f"v{a+i}", f"v{b+i}") for i in range(2)])
    pend = []
    def silu(zq, b, m, par):
        L = []
        eq = [take(), take()]
        z, e = flat8(zq), flat8(eq)
        L += [V("v_exp_f32", e[i], z[i]) for i in range(8)]
        for st, dq in pend: L.insert(c["stpos"], st); give(dq)
        pend.clear()
        L += [Pair(V("v_pk_fma_f32", R("v", x, 2), R("v", x, 2), sC2, sC2), [V("v_fma_f32", f"v{x+i}", f"v{x+i}", sC, sC) for i in range(2)]) for x in prs(eq)]
        L += [V("v_rcp_f32", x, x) for x in e]
        L += [pop("mul", x, x, y) for x, y in zip(prs(zq), prs(eq))]
        st = lambda q: BST("buffer_store_dwordx4", R("v", q, 4), vST, SO, sOB[b], par * ROW + 64 * m, flags=c["stflags"], cost=c["stc"])
        L += [V("v_cvt_pk_bf16_f32", e[i], z[2 * i], z[2 * i + 1]) for i in (0, 2, 1, 3)]
        L.append(V("v_permlane16_swap_b32", e[0], e[2]))
        pend.append((st(eq[0]), eq[0])); pend.append((V("v_permlane16_swap_b32", e[1], e[3]), 0)); give(zq[0], zq[1], eq[1])
        return L
    qq = lambda m, b: [QB + 4 * (4 * m + b), QB + 4 * (4 * m + 2 + b)]
    def even_rows(m, b):
        js = (4 * m + b, 4 * m + 2 + b)
        L = []
        if m < 4: pq = [PB + 4 * j for j in js]
        else:
            pq = [take(), take()]
            L += [V("v_accvgpr_read_b32", f"v{pq[u]+r}", f"a{144+4*(js[u]-16)+r}") for u in range(2) for r in range(4)]
        zq = [take(), take()]
        L += [pop("add", z, p, q) for z, p, q in zip(prs(zq), prs(pq), prs(qq(m, b)))]
        L += [pop("add", q, p, q, True) for p, q in zip(prs(pq), prs(qq(m, b)))]
        give(*pq)
        return L + silu(zq, b, m, 0)
    dppl = "row_shl:1 row_mask:0xf bank_mask:0xf bound_ctrl:1"
    def fold(m, b):
        rq = [Rq(m, 0, b), Rq(m, 1, b)]
        L = [V("v_sub_f32_dpp", r, r, r, mod=dppl) for r in flat8(rq[::-1] if c["chain"] else rq)]
        return L + [pop("add", x, x, y) for x, y in zip(prs(qq(m, b)), prs(rq))]
    r_rd = lambda m: [DSR("ds_read_b128", R("v", Rq(m, u, 1 - u), 4), vTAB, 2048 + 64 * (2 * m + u)) for u in range(2)]
    r_mul = lambda m: [V("v_mul_f32", r, vTF, r) for r in flat8([Rq(m, 0, 1), Rq(m, 1, 0)])]
    fill(r_rd(0) + [V("v_bfe_u32", vTF, vWLO, 4, 4), V("v_subrev_u32", vTF, 16, vTF), V("v_cvt_f32_i32", vTF, vTF), V("v_add_f32", vTF, vTF, vTF)], 72 * 26 + 4, 72 * 26 + 24)
    fill(r_mul(0), 72 * 26 + 24, 72 * 26 + 48)
    todo0 = [(m, b) for m in range(9) for b in range(2)]
    for m in range(9):
        n0 = c["ny0"][m]
        L = even_rows(*todo0.pop(0))
        if m == 0:
            L += even_rows(*todo0.pop(0)) + even_rows(*todo0.pop(0)) + r_rd(1)
            for _ in range(n0 - 4): L += even_rows(*todo0.pop(0))
            L2 = even_rows(*todo0.pop(0))
            L += L2[:8] + r_mul(1) + L2[8:]
        else:
            assert (m - 1, 1) not in todo0
            L += fold(m - 1, 0) + fold(m - 1, 1) + (r_rd(m + 1) if m < 8 else [])
            L += silu(qq(m - 1, 0), 0, m - 1, 1) + (r_mul(m + 1) if m < 8 else []) + silu(qq(m - 1, 1), 1, m - 1, 1)
            for _ in range(n0 - 1): L += even_rows(*todo0.pop(0))
        sched(L, 72 * (27 + m) + (2 if m == 0 else 0), min(72 * (28 + m), NM - 1))
    assert not todo0

    T = [I("", "fence")] + stamp()
    T += fold(8, 1) + silu(qq(8, 1), 1, 8, 1) + fold(8, 0) + silu(qq(8, 0), 0, 8, 1) + [x[0] for x in pend[::-1]]
    T = [i.pk if i.kind == "pair" else i for i in T]
    if c["stamps"]:
        T += stamp()
        T.append(I("", "drain"))
        T += stamp()
        T.append(RAW("s_waitcnt lgkmcnt(0)", "wait"))
        if c["diag"]:
            a, b, mult = c["diag"]
            T += [S("s_sub_u32", "s3", f"s{sRT[b]}", f"s{sRT[a]}"), S("s_mul_i32", "s3", "s3", mult), S("s_min_u32", "s3", "s3", 20000),
                  RAW("L_diag:", "label"), RAW("s_memrealtime s[4:5]", "salu"), RAW("s_waitcnt lgkmcnt(0)", "wait"),
                  S("s_sub_u32", "s4", "s4", f"s{sRT[7]}"), S("s_cmp_lt_u32", "s4", "s3"), RAW("s_cbranch_scc1 L_diag", "salu")]
        for k in range(8): T.append(V("v_mov_b32", f"v{k}", f"s{sSTAMP+2*k}"))
        for k in range(8): T.append(V("v_mov_b32", f"v{8+k}", f"s{sRT[k]}"))
        T += [S("s_lshl_b32", sT[0], "s2", 8), S("s_lshl_b32", sT[1], sWAVE, 6), S("s_add_u32", sT[0], sT[0], sT[1]), S("s_add_u32", sT[0], sT[0], 1 << 22),
              S("s_mov_b32", "s18", 1 << 23), V("v_mov_b32", "v16", 0), RAW("s_mov_b64 exec, 1", "salu")]
        for k in range(4): T.append(BST("buffer_store_dwordx4", R("v", 4 * k, 4), "v16", SG, sT[0], 16 * k))

    prog = list(P)
    for g in range(G0, NM):
        if g >= 0: prog.append(mf[g])
        gp = gaps[g]
        if c["ablr"][0] * 72 <= g < c["ablr"][1] * 72:
            drop = lambda i: (("v" in c["abl"] and i.kind in VALUK + ("dsw", "vst")) or ("r" in c["abl"] and i.kind == "dsr" and "a" in i.txt.split()[1])
                              or ("h" in c["abl"] and i.kind == "dsr" and "a" in i.txt.split()[1] and (g >> 1) & 1)
                              or ("d" in c["abl"] and i.kind == "dma") or ("x" in c["abl"] and i.kind == "dma" and i.tag[0] == "X")
                              or ("w" in c["abl"] and i.kind == "dma" and i.tag[0] == "W") or ("s" in c["abl"] and i.kind == "vst"))
            gp.mem = [i for i in gp.mem if not drop(i)]; gp.valu = [i for i in gp.valu if not drop(i)]
            if "n" in c["abl"] and g in barrier: barrier[g] = ([], [])
            if "b" in c["abl"] and g in barrier:
                prog.append(WAITPT(*barrier[g])); prog += gp.pre + gp.mem + gp.valu + gp.post
                continue
        if g in barrier:
            prog += [WAITPT(*barrier[g]), BAR()]
        elif g % 2 == 1 and g >= -1:
            prog.append(WAITPT(vm=waits.get(g, [])))
        prog += gp.pre + gp.mem + gp.valu + gp.post
    prog += T
    last = {}
    for it in prog:
        if id(it) in expect and not c["abl"]:
            for r, w in expect[id(it)].items(): assert last[r] is w, (it.txt, r, last[r].txt, w.txt)
        if id(it) in kinds and not c["abl"]:
            for r, w in kinds[id(it)].items(): assert last[r].txt.startswith(w), (it.txt, r, last[r].txt)
        for r in it.wr: last[r] = it
    held, ready, lastrd, nm = {}, set(), {}, 0
    for it in prog:
        nm += it.kind == "mfma"
        if it.kind in ("waitpt", "waittag"): ready |= set(it.tag[0])
        gn = owner.get(id(it))
        if gn is None or c["abl"]: continue
        if it.kind == "dma":
            assert nm - lastrd.get(gn.slot, -99) >= 8, gn.name
            assert "X" + gn.name not in ready
            held[gn.slot] = gn
        else:
            assert held[gn.slot] is gn and "X" + gn.name in ready, gn.name
            lastrd[gn.slot] = nm
    stats = {"fills": fills[:7] + fills[-12:-11]}
    prog = pad_hazards(insert_waits(prog, stats), stats)

    if c["pf2"]:
        size = lambda i: 0 if i.kind == "label" else (4 if i.kind in ("wait", "nop", "bar", "trans") else 8 if i.kind != "valu" else 6)
        total = sum(size(i) for i in prog)
        out, off, page = [], 0, 2
        for k, it in enumerate(prog):
            out.append(it); off += size(it)
            if it.kind == "mfma" and prog[k + 1].kind not in ("salu", "wait") and off >= page * 4096 - c["pfd"] - 4096 and page <= 17:
                if "a" in c["pf2"]: out.append(RAW(f"s_load_dword s76, s[0:1], {page * 4096}", "salu"))
                if "b" in c["pf2"] and page < 17: out.append(RAW(f"s_load_dword s77, s[78:79], {page * 4096}", "salu"))
                page += 1
        prog = out

    Z = []
    A = Z.append
    A(RAW("L_slow:", "label"))
    A(S("s_mov_b32", sT[4], c["spin"]))
    A(RAW("L_spin:", "label"))
    A(V("v_lshlrev_b32", vPOLL, 7, sH))
    A(BLD("buffer_load_dword", vPOLL, vPOLL, SD, 0, flags="sc1"))
    A(I("", "drain"))
    A(V("v_readfirstlane_b32", sT[0], vPOLL))
    A(S("s_sub_u32", sT[4], sT[4], 1))
    A(S("s_cmp_ge_u32", sT[0], 81)); A(RAW("s_cbranch_scc1 L_back", "salu"))
    A(S("s_cmp_lg_u32", sT[4], 0)); A(RAW("s_cbranch_scc1 L_spin", "salu"))
    A(S("s_mov_b32", sPN, 0))
    A(V("v_lshrrev_b32", "v238", 4, vWLO)); A(V("v_and_b32", "v239", 15, "v238")); A(V("v_lshlrev_b32", "v239", 1, "v239"))
    A(V("v_lshrrev_b32", "v238", 4, "v238")); A(V("v_mul_u32_u24", "v238", 8 * ROW, "v238")); A(V("v_add_u32", "v238", "v238", "v239"))
    A(RAW("L_fn:", "label"))
    A(S("s_mov_b32", sPK, 0))
    A(RAW("L_fk:", "label"))
    Z += prod_addr()
    A(V("v_add_u32", "v255", sT[2], "v239"))
    A(GLD("global_load_ushort", "v253", "v255", "s[70:71]")); A(GLD("global_load_ushort", "v254", "v255", "s[72:73]"))
    for tap in range(3):
        for j in range(8):
            A(BLD("buffer_load_ushort", f"v{200+8*tap+j}", "v238", SW, sPSRC))
            A(S("s_add_u32", sPSRC, sPSRC, ROW if j < 7 else TAP - 7 * ROW))
    A(S("s_add_u32", sPSRC, sPDST, SLOT // 2))
    A(I("", "drain"))
    for i in list(range(200, 224)) + [253, 254]: A(V("v_lshlrev_b32", f"v{i}", 16, f"v{i}"))
    Z += scale_calc("v253", "v254", None)
    A(V("v_mul_f32", "v253", f2u(-LOG2E / 2), "v253"))
    for j in range(4):
        pr = lambda tap: (f"v{200+8*tap+2*j}", f"v{201+8*tap+2*j}")
        Z += prod_pair(pr(0), pr(1), pr(2), "v253", f"v{224+j}", f"v{228+j}", f"v{232+j}", ("v236", "v237"))
    Z += prod_store(SG, 224)
    A(I("", "drain"))
    A(S("s_add_u32", sPK, sPK, 1)); A(S("s_cmp_lt_u32", sPK, 18)); A(RAW("s_cbranch_scc1 L_fk", "salu"))
    A(S("s_add_u32", sPN, sPN, 1)); A(S("s_cmp_lt_u32", sPN, 18)); A(RAW("s_cbranch_scc1 L_fn", "salu"))
    A(RAW("s_branch L_back", "salu"))
    Z = pad_hazards(insert_waits(Z))

    head = open("standalone__batchnorm__sampling.s.ref").read().split("; Override")[0]
    def text(prog, extra=()):
        o = [head + "; @launch grid=(256,1,1) block=(256,1,1) lds=163840", '.amdgcn_target "amdgcn-amd-amdhsa--gfx950"', ".text", f".globl {NAME}"]
        o += [".p2align 12"] if c["align"] else []
        o += [".p2align 8", f".type {NAME},@function", f"{NAME}:", "s_cmp_lt_u32 s2, 256", "s_cbranch_scc1 L_go", "s_endpgm", "L_go:"]
        o += [i.txt for i in prog]
        o += ["s_endpgm"] + [i.txt for i in Z] + ["L_codeend:"] + list(extra) + ["s_endpgm"]
        o += ['.section .rodata,"a"', ".p2align 6", f".amdhsa_kernel {NAME}", "  .amdhsa_next_free_vgpr 512", "  .amdhsa_next_free_sgpr 102",
              "  .amdhsa_accum_offset 256", "  .amdhsa_group_segment_fixed_size 0", "  .amdhsa_kernarg_size 72", "  .amdhsa_user_sgpr_count 2",
              "  .amdhsa_user_sgpr_kernarg_segment_ptr 1", "  .amdhsa_system_sgpr_workgroup_id_x 1", ".end_amdhsa_kernel", ""]
        return "\n".join(o)
    if vret:
        sz = iter(sizes(text(prog, [f"L_pg{p}:" for p in vret]))[3:])
        size = [0 if i.kind == "label" else next(sz) for i in prog]
        out, off, todo = [], c["kofs"] + 16, sorted(vret)
        for k, it in enumerate(prog):
            if todo and off >= 4096 * todo[0]:
                good = prog[k - 1].kind == "mfma" and it.kind not in ("salu", "wait", "bar")
                o2, later = off, False
                for j in range(k, k + 16):
                    o2 += size[j]
                    if o2 > 4096 * todo[0] + 28: break
                    if prog[j].kind == "mfma" and prog[j + 1].kind not in ("salu", "wait", "bar"): later = True
                if good or not later:
                    p = todo.pop(0)
                    out += [RAW(f"L_pg{p}:", "label"), RAW(f"s_cbranch_vccnz {vret[p]}", "salu")]
                    off += 4
            out.append(it); off += size[k]
        for p in todo: out += [RAW(f"L_pg{p}:", "label"), RAW(f"s_cbranch_vccnz {vret[p]}", "salu")]
        prog = out
        stats["end"] = hex(off)
    return text(prog), stats

def sizes(txt):
    import subprocess, tempfile, re, os
    d = tempfile.mkdtemp()
    open(d + "/a.s", "w").write(txt)
    subprocess.run(["clang", "-target", "amdgcn-amd-amdhsa", "-mcpu=gfx950", "-c", d + "/a.s", "-o", d + "/a.o"], check=True)
    dis = subprocess.run(["llvm-objdump", "-d", d + "/a.o"], capture_output=True, text=True).stdout
    return [4 * len(m.group(1).split()) for m in re.finditer(r"// [0-9A-F]{12}: ((?:[0-9A-F]{8} ?)+)", dis)]

if __name__ == "__main__":
    out = sys.argv[1]
    kw = {}
    for a in sys.argv[2:]:
        k, v = a.split("=", 1)
        kw[k] = eval(v)
    txt, stats = gen(**kw)
    open(out, "w").write(txt)
    nl = stats.pop("noplist", [])
    print(out, len(txt), "bytes", txt.count("\n"), "lines", stats)
    for x in nl:
        if x[0] > 450: print("  nop", x)
```
